```python
import torch

def _softmax(x, axis=-1):
    return torch.softmax(x, dim=axis)
def _gelu(x):
    return torch.nn.functional.gelu(x, approximate="tanh")
def _silu(x):
    return torch.nn.functional.silu(x)
def _sigmoid(x):
    return torch.sigmoid(x)
def _layernorm(x, axis=-1, eps=1e-5):
    m = x.mean(dim=axis, keepdim=True)
    v = x.var(dim=axis, keepdim=True, unbiased=False)
    return (x - m) / torch.sqrt(v + eps)
def _scatter_add(tgt, idx, src, axis=0):
    return tgt.clone().index_add_(axis, idx, src)
def _segment_sum(src, seg, n):
    out = torch.zeros((n,) + src.shape[1:], dtype=src.dtype)
    return out.index_add_(0, seg, src)
def _pad(x, pw):
    flat = tuple(v for pair in reversed(pw) for v in pair)
    return torch.nn.functional.pad(x, flat)

kernel_name = 'concat_heads__sliding_block_cached__mha_block_cached__decode'

def setup_inputs():

    _w = (lambda a: (lambda t: t.to(torch.bfloat16) if t.is_floating_point() else t)(torch.as_tensor(a)))
    def _A_setup():
        B, Sq, D = 1, 1, 1024
        Hq, Hkv, Sk, Dh = 32, 4, 32768, 128
        assert Hq % Hkv == 0, (Hq, Hkv)
        return {
            "x": _w((lambda *s: torch.randn(*s, dtype=torch.bfloat16) * 0.8)(B, Sq, D)),
            "k_cache": _w((lambda *s: torch.randn(*s, dtype=torch.bfloat16) * 1.6)(B, Hkv, Sk, Dh)),
            "v_cache": _w((lambda *s: torch.randn(*s, dtype=torch.bfloat16) * 0.2)(B, Hkv, Sk, Dh)),
            "wq": _w((lambda *s: torch.randn(*s, dtype=torch.bfloat16) * 1.6)(D, Hq * Dh) * (D ** -0.5)),
            "wo": _w((lambda *s: torch.randn(*s, dtype=torch.bfloat16) * 0.2)(Hq * Dh, D) * ((Hq * Dh) ** -0.5)),
        }
    _A_in = _A_setup()

    def _B_setup():
        B, Sq, D = 1, 1, 1024
        H, Sk, Dh = 32, 32768, 128
        return {
            "x": _w((lambda *s: torch.randn(*s, dtype=torch.bfloat16) * 0.8)(B, Sq, D)),
            "k_cache": _w((lambda *s: torch.randn(*s, dtype=torch.bfloat16) * 1.6)(B, H, Sk, Dh)),
            "v_cache": _w((lambda *s: torch.randn(*s, dtype=torch.bfloat16) * 0.2)(B, H, Sk, Dh)),
            "wq": _w((lambda *s: torch.randn(*s, dtype=torch.bfloat16) * 1.6)(D, H * Dh) * (D ** -0.5)),
            "wo": _w((lambda *s: torch.randn(*s, dtype=torch.bfloat16) * 0.2)(H * Dh, D) * ((H * Dh) ** -0.5)),
        }
    _B_in = _B_setup()

    return {
        "A_x": _A_in["x"],
        "A_k_cache": _A_in["k_cache"],
        "A_v_cache": _A_in["v_cache"],
        "A_wq": _A_in["wq"],
        "A_wo": _A_in["wo"],
        "B_x": _B_in["x"],
        "B_k_cache": _B_in["k_cache"],
        "B_v_cache": _B_in["v_cache"],
        "B_wq": _B_in["wq"],
        "B_wo": _B_in["wo"],
    }

def reference(A_x, A_k_cache, A_v_cache, A_wq, A_wo, B_x, B_k_cache, B_v_cache, B_wq, B_wo):
    def _A_ref(x, k_cache, v_cache, wq, wo):
        B, Sq, D = x.shape
        Hq, Dh = 32, 128
        Hkv, Sk = k_cache.shape[1], k_cache.shape[2]
        W = min(4096, max(256, Sk // 4))
        rep = Hq // Hkv
        q = (lambda x, *d: x.permute(*d))((x @ wq).reshape(B, Sq, Hq, Dh), 0, 2, 1, 3)
        k = (lambda x, n, axis: torch.repeat_interleave(x, n, dim=axis))(k_cache[:, :, Sk - W:, :], rep, axis=1)
        v = (lambda x, n, axis: torch.repeat_interleave(x, n, dim=axis))(v_cache[:, :, Sk - W:, :], rep, axis=1)
        scores = torch.einsum("bhqd,bhkd->bhqk", q, k) * (Dh ** -0.5)
        p = _softmax(scores, axis=-1)
        o = torch.einsum("bhqk,bhkd->bhqd", p, v)
        return (lambda x, *d: x.permute(*d))(o, 0, 2, 1, 3).reshape(B, Sq, Hq * Dh) @ wo

    def _B_ref(x, k_cache, v_cache, wq, wo):
        B, Sq, D = x.shape
        H, Dh = 32, 128
        q = (lambda x, *d: x.permute(*d))((x @ wq).reshape(B, Sq, H, Dh), 0, 2, 1, 3)
        scores = torch.einsum("bhqd,bhkd->bhqk", q, k_cache) * (Dh ** -0.5)
        p = _softmax(scores, axis=-1)
        o = torch.einsum("bhqk,bhkd->bhqd", p, v_cache)
        return (lambda x, *d: x.permute(*d))(o, 0, 2, 1, 3).reshape(B, Sq, H * Dh) @ wo

    a = _A_ref(A_x, A_k_cache, A_v_cache, A_wq, A_wo)
    b = _B_ref(B_x, B_k_cache, B_v_cache, B_wq, B_wo)
    return torch.concatenate([a, b], axis=-1)
```

```python
import re

def regs_of(tok):
    tok = tok.strip()
    neg = tok.lstrip("-")
    if neg.startswith("abs(") or neg.startswith("|"):
        neg = neg.replace("abs(", "").replace(")", "").replace("|", "")
    tok = neg
    m = re.fullmatch(r"([vsa])(\d+)", tok)
    if m: return {(m.group(1), int(m.group(2)))}
    m = re.fullmatch(r"([vsa])\[(\d+):(\d+)\]", tok)
    if m: return {(m.group(1), k) for k in range(int(m.group(2)), int(m.group(3)) + 1)}
    if tok == "vcc": return {("s", "vcc_lo"), ("s", "vcc_hi")}
    if tok in ("vcc_lo", "vcc_hi"): return {("s", tok)}
    if tok == "exec": return {("s", "exec")}
    if tok == "m0": return {("s", "m0")}
    return set()

TRANS = ("v_exp_f32", "v_log_f32", "v_rcp_f32", "v_rsq_f32", "v_sqrt_f32", "v_sin_f32", "v_cos_f32")

class Ins:
    def __init__(self, text):
        self.text = text
        self.label = None
        t = text.split(";")[0].strip()
        if t.endswith(":"):
            self.label = t[:-1]; self.op = None; self.w = set(); self.r = set(); return
        if t.startswith(".") or not t:
            self.op = "."; self.w = set(); self.r = set(); return
        parts = t.split(None, 1)
        self.op = op = parts[0]
        rest = parts[1] if len(parts) > 1 else ""
        ops = []; depth = 0; cur = ""
        for ch in rest:
            if ch == "[": depth += 1
            if ch == "]": depth -= 1
            if ch == "," and depth == 0: ops.append(cur.strip()); cur = ""
            else: cur += ch
        if cur.strip(): ops.append(cur.strip())
        mods = ""
        if ops:
            last = ops[-1].split(None, 1)
            ops[-1] = last[0]
            mods = last[1] if len(last) > 1 else ""
        self.ops = ops; self.mods = mods
        self.valu = op.startswith("v_")
        self.dpp = "_dpp" in op
        self.dot = op.startswith("v_dot")
        self.trans = op.replace("_e32", "").replace("_e64", "") in TRANS
        self.vmem = op.startswith(("buffer_", "global_", "flat_"))
        self.ds = op.startswith("ds_")
        self.widestore = self.vmem and "store" in op and ("x3" in op or "x4" in op)
        R = [regs_of(o) for o in ops]
        w = set(); r = set()
        if self.valu:
            if op.startswith("v_permlane"):
                w = R[0] | R[1]; r = R[0] | R[1]
            elif op.startswith("v_cmp"):
                w = R[0]; r = set().union(*R[1:])
            elif op.startswith(("v_add_co", "v_sub_co", "v_addc_co", "v_subb_co")):
                w = R[0] | R[1]; r = set().union(*R[2:])
            else:
                w = R[0]; r = set().union(*R[1:]) if len(R) > 1 else set()
                if op.startswith(("v_dot2c", "v_fmac")) or self.dpp: r |= R[0]
                if op.startswith("v_cndmask") and len(ops) == 3: r |= regs_of("vcc")
            self.srcab = set().union(*R[1:3]) if len(R) > 2 else set()
            self.dppsrc = R[1] if self.dpp else set()
        elif self.vmem:
            if "load" in op and "lds" not in mods: w = R[0]; r = set().union(*R[1:])
            elif "atomic" in op and "sc0" in mods and op.startswith("global"): w = R[0]; r = set().union(*R[1:])
            else: r = set().union(*R) if R else set()
            if self.widestore:
                self.data = R[0] if op.startswith("buffer") else R[1]
        elif self.ds:
            if "read" in op or "bpermute" in op or "swizzle" in op: w = R[0]; r = set().union(*R[1:])
            else: r = set().union(*R)
        elif op.startswith("s_"):
            if op.startswith(("s_cmp", "s_cbranch", "s_branch", "s_waitcnt", "s_nop", "s_barrier", "s_endpgm", "s_sleep", "s_setprio")):
                r = set().union(*R) if R else set()
            else:
                w = R[0]; r = set().union(*R[1:]) if len(R) > 1 else set()
        self.w = w; self.r = r

    def states(self):
        if self.label or self.op == ".": return 0
        if self.op == "s_nop": return int(self.ops[0], 0) + 1
        return 1

def need(p, c):
    n = 0
    if p.label or c.label or p.op == "." or c.op == ".": return 0
    pv = {x for x in p.w if x[0] == "v"}
    ps = {x for x in p.w if x[0] == "s"}
    if getattr(p, "valu", False):
        if getattr(c, "valu", False):
            if c.dpp and pv & c.dppsrc: n = max(n, 2)
            if c.op.startswith("v_permlane") and pv & c.r: n = max(n, 2)
            if c.op.startswith(("v_readlane", "v_readfirstlane")) and pv & c.r: n = max(n, 1)
            if p.trans and not c.trans and pv & c.r: n = max(n, 1)
            if p.trans and c.trans and pv & c.r: n = max(n, 1)
            if ps & c.r: n = max(n, 4 if c.op.startswith(("v_readlane", "v_writelane")) else 2)
            if p.dot:
                same = p.op.replace("_dpp", "").replace("_e32", "") == c.op.replace("_dpp", "").replace("_e32", "")
                if same:
                    if pv & c.srcab: n = max(n, 3)
                elif pv & (c.r | c.w): n = max(n, 3)
            if "sdwa" in p.op and pv & (c.r | c.w): n = max(n, 1)
        elif getattr(c, "vmem", False) or getattr(c, "ds", False):
            if ps & c.r: n = max(n, 5)
            if p.dot and pv & (c.r | c.w): n = max(n, 3)
            if p.trans and pv & c.r: n = max(n, 1)
        elif c.op.startswith("s_"):
            if ps & c.r: n = max(n, 1)
    if getattr(p, "widestore", False) and (p.data & c.w): n = max(n, 2)
    return n

MAXD = 5
class Asm:
    def __init__(self): self.ins = []
    def __call__(self, text):
        for line in text.strip().split("\n"):
            line = line.strip()
            if line: self.ins.append(Ins(line))
    def fix(self):
        ins = self.ins
        lab = {x.label: i for i, x in enumerate(ins) if x.label}
        preds = {i: [] for i in range(len(ins))}
        for i, x in enumerate(ins):
            if x.op in ("s_branch",) or (x.op or "").startswith("s_cbranch"):
                preds[lab[x.ops[0]]].append(i)
            if i + 1 < len(ins) and x.op not in ("s_branch", "s_endpgm"):
                preds[i + 1].append(i)
        extra = [0] * len(ins)
        changed = True
        while changed:
            changed = False
            for i, c in enumerate(ins):
                if c.label or c.op == ".": continue
                short = 0
                stack = [(p, extra[i]) for p in preds[i]]; seen = set()
                while stack:
                    k, d = stack.pop()
                    if (k, d) in seen or d >= MAXD: continue
                    seen.add((k, d))
                    p = ins[k]
                    nd = need(p, c)
                    if nd > d: short = max(short, nd - d)
                    d2 = d + p.states() + extra[k]
                    stack += [(q, d2) for q in preds[k]]
                if short:
                    extra[i] += short; changed = True
        out = []
        for i, x in enumerate(ins):
            if extra[i]: out.append(Ins(f"s_nop {extra[i] - 1}"))
            out.append(x)
        self.ins = out
        return sum(1 for x in extra if x)
    def text(self):
        return "\n".join((x.text if x.label else "    " + x.text) for x in self.ins) + "\n"
```

```python
from common import *
from asmlib import Asm
import struct, json

def fbits(x): return "0x%08x" % struct.unpack("<I", struct.pack("<f", x))[0]
SC = 128 ** -0.5 * 1.4426950408889634
WS_QB, WS_QA, WS_PA, WS_PB, WS_ML, WS_OA, WS_OB, WS_END = 0x10000, 0x30000, 0x50000, 0x90000, 0xB0000, 0xC0000, 0xE0000, 0x100000
L_RED1, L_Q, L_OA, L_MLW, L_FW, L_CNT, L_QA, L_RED3, L_RED4, L_SC, L_END = 0, 4096, 4352, 4608, 4640, 4656, 5120, 7168, 9216, 13312, 29696
S_I, S_V, S_W, S_W2, S_WS, S_X, S_OUT = "s[44:47]", "s[48:51]", "s[52:55]", "s[56:59]", "s[60:63]", "s[64:67]", "s[68:71]"
DPPF = "row_mask:0xf bank_mask:0xf"
def br4(i): return ((i & 1) << 3) | ((i & 2) << 1) | ((i & 4) >> 1) | ((i & 8) >> 3)
def br3(i): return ((i & 1) << 2) | (i & 2) | ((i & 4) >> 2)
def vr(a, n=4): return f"v[{a}:{a+n-1}]"

def gen(D="5", DA=5, prof=0, ld="nt", ldw="nt", prio=2, spin=400000, trig=4, slp1=0, slp2=0, noA=0):
    Dp = [int(c) for c in str(D)]
    Dmax = max(Dp)
    e = Asm()
    def stamp(k):
        if prof: e(f"s_memrealtime s[{80+2*k}:{81+2*k}]")
    def srd(name, base, off_sgpr, size):
        n = int(name[2:name.index(":")])
        if off_sgpr is None:
            e(f"s_mov_b32 s{n}, s{base}\ns_mov_b32 s{n+1}, s{base+1}")
        else:
            e(f"s_add_u32 s{n}, s{base}, {off_sgpr}\ns_addc_u32 s{n+1}, s{base+1}, 0")
        e(f"s_mov_b32 s{n+2}, {size}\ns_mov_b32 s{n+3}, 0x20000")
    def reduce_rows(*accs):
        for a in accs:
            for k in range(4): e(f"v_permlane32_swap_b32 v{a+k}, v{a+k+4}")
        for a in accs:
            for k in range(4): e(f"v_add_f32 v{a+k}, v{a+k}, v{a+k+4}")
        for a in accs:
            for k in range(2): e(f"v_permlane16_swap_b32 v{a+k}, v{a+k+2}")
        for a in accs:
            for k in range(2): e(f"v_add_f32 v{a+k}, v{a+k}, v{a+k+2}")
    def rows_allred(x, t, op):
        e(f"v_mov_b32 v{t}, v{x}\nv_permlane32_swap_b32 v{x}, v{t}\n{op} v{x}, v{x}, v{t}")
        e(f"v_mov_b32 v{t}, v{x}\nv_permlane16_swap_b32 v{x}, v{t}\n{op} v{x}, v{x}, v{t}")
    def row_allred(x, op):
        for n in (8, 4, 2, 1): e(f"{op}_dpp v{x}, v{x}, v{x} row_ror:{n} {DPPF}")
    def red8(x, op):
        e(f"{op}_dpp v{x}, v{x}, v{x} quad_perm:[1,0,3,2] {DPPF}")
        e(f"{op}_dpp v{x}, v{x}, v{x} quad_perm:[2,3,0,1] {DPPF}")
        e(f"{op}_dpp v{x}, v{x}, v{x} row_half_mirror {DPPF}")
    def tag(*regs):
        for x in regs: e(f"v_and_or_b32 v{x}, v{x}, v15, s6")
    def untag(*regs):
        for x in regs: e(f"v_and_b32 v{x}, v{x}, v15")
    PS, L1, L2, L3, TA, TB = (32, 33), (34, 35), (36, 37), (38, 39), 40, 41
    def bfly_dots(i, kreg, qreg):
        ps = PS[i & 1]
        e(f"v_dot2_f32_bf16 v{ps}, v{kreg}, v{qreg}, 0")
        for d in range(1, 4): e(f"v_dot2_f32_bf16 v{ps}, v{kreg+d}, v{qreg+d}, v{ps}")
    def bfly_red(i, out):
        if i & 1:
            t = L1[(i >> 1) & 1]
            e(f"v_add_f32_dpp v{t}, v{PS[0]}, v{PS[0]} row_ror:8 row_mask:0xf bank_mask:0x3")
            e(f"v_add_f32_dpp v{t}, v{PS[1]}, v{PS[1]} row_ror:8 row_mask:0xf bank_mask:0xc")
        if i & 3 == 3:
            t = L2[(i >> 2) & 1]
            e(f"v_add_f32_dpp v{t}, v{L1[0]}, v{L1[0]} row_shl:4 row_mask:0xf bank_mask:0x5")
            e(f"v_add_f32_dpp v{t}, v{L1[1]}, v{L1[1]} row_shr:4 row_mask:0xf bank_mask:0xa")
        if i & 7 == 7:
            t = L3[(i >> 3) & 1]
            e(f"v_add_f32_dpp v{TA}, v{L2[0]}, v{L2[0]} quad_perm:[2,3,0,1] {DPPF}")
            e(f"v_add_f32_dpp v{TB}, v{L2[1]}, v{L2[1]} quad_perm:[2,3,0,1] {DPPF}")
            e(f"v_cndmask_b32 v{t}, v{TA}, v{TB}, s[10:11]")
        if i == 15:
            e(f"v_add_f32_dpp v{TA}, v{L3[0]}, v{L3[0]} quad_perm:[1,0,3,2] {DPPF}")
            e(f"v_add_f32_dpp v{TB}, v{L3[1]}, v{L3[1]} quad_perm:[1,0,3,2] {DPPF}")
            e(f"v_cndmask_b32 v{out}, v{TA}, v{TB}, s[12:13]")
    lab = [0]
    def poll(loads, regs, sleep, tmp=42, between=None, mask=None):
        n = lab[0]; lab[0] += 1
        e(f"s_mov_b32 s76, {spin}")
        if between:
            loads(); between(); e(f"s_branch L_pollc{n}")
        e(f"L_poll{n}:")
        loads()
        e(f"L_pollc{n}:")
        e("s_waitcnt vmcnt(0)")
        pairs = [regs[i:i+2] for i in range(0, len(regs), 2)]
        for k, (a, b) in enumerate(pairs):
            if k == 0: e(f"v_bitop3_b32 v{tmp}, v{a}, v{b}, s6 bitop3:0x7e")
            else:
                e(f"v_bitop3_b32 v{tmp+1}, v{a}, v{b}, s6 bitop3:0x7e")
                e(f"v_or_b32 v{tmp}, v{tmp}, v{tmp+1}")
        e(f"v_and_b32 v{tmp}, 0xff, v{tmp}\nv_cmp_ne_u32 vcc, 0, v{tmp}")
        e("s_sub_u32 s76, s76, 1")
        e(f"s_cbranch_scc1 L_polld{n}")
        e("s_cmp_eq_u64 vcc, 0")
        e(f"s_cbranch_scc1 L_polld{n}")
        if mask == "jj":
            e("s_or_b32 s7, vcc_lo, vcc_hi\ns_lshr_b32 s8, s7, 16\ns_or_b32 s7, s7, s8\ns_lshr_b32 s8, s7, 8\ns_or_b32 s7, s7, s8")
            e("s_and_b32 s7, s7, 0xff\ns_mul_i32 s7, s7, 0x01010101\ns_mov_b32 exec_lo, s7\ns_mov_b32 exec_hi, s7")
        if mask == "byte":
            for sh in (4, 2, 1): e(f"s_lshr_b64 s[16:17], vcc, {sh}\ns_or_b64 vcc, vcc, s[16:17]")
            e("s_and_b32 s7, vcc_lo, 0x01010101\ns_and_b32 s8, vcc_hi, 0x01010101\ns_mul_i32 exec_lo, s7, 0xff\ns_mul_i32 exec_hi, s8, 0xff")
        if sleep: e(f"s_sleep {sleep}")
        e(f"s_branch L_poll{n}")
        e(f"L_polld{n}:")
        if mask: e("s_mov_b64 exec, -1")
    def ldswait(off, val, sleep):
        n = lab[0]; lab[0] += 1
        e(f"s_mov_b32 s76, {spin}\nL_lw{n}:\nds_read_b32 v42, v1 offset:{off}\ns_waitcnt lgkmcnt(0)\nv_readfirstlane_b32 s8, v42")
        e(f"s_cmp_ge_u32 s8, {val}\ns_cbranch_scc1 L_lwd{n}\ns_sub_u32 s76, s76, 1\ns_cbranch_scc1 L_lwd{n}\ns_sleep {sleep}\ns_branch L_lw{n}\nL_lwd{n}:")
    WSZ = 0x20100000 if prof else WS_END
    e("s_cmp_ge_u32 s2, 256\ns_cbranch_scc1 L_end")
    stamp(0)
    e("s_load_dwordx16 s[16:31], s[0:1], 0\ns_load_dwordx8 s[32:39], s[0:1], 64\ns_load_dwordx2 s[40:41], s[0:1], 96")
    e("v_lshrrev_b32 v1, 6, v0\nv_and_b32 v0, 63, v0\nv_readfirstlane_b32 s3, v1")
    e("v_lshrrev_b32 v2, 4, v0\nv_and_b32 v3, 15, v0")
    e("s_lshr_b32 s4, s2, 3\ns_and_b32 s5, s2, 7")
    e("s_mov_b32 s10, 0xcccccccc\ns_mov_b32 s11, 0xcccccccc\ns_mov_b32 s12, 0xaaaaaaaa\ns_mov_b32 s13, 0xaaaaaaaa")
    e(f"s_mov_b32 s14, {fbits(SC)}\ns_mov_b32 s74, 0x05040100\ns_mov_b32 s75, 0x07060302")
    e("v_lshlrev_b32 v4, 4, v0")
    e("v_lshl_add_u32 v5, v3, 2, v2\nv_lshlrev_b32 v5, 4, v5")
    e("v_and_b32 v6, 7, v3\nv_mov_b32 v15, 0xffffff00\nv_mov_b32 v1, 0")
    e("s_lshl_b32 s7, s5, 20\ns_lshl_b32 s8, s4, 8\ns_add_u32 s7, s7, s8")
    e("s_waitcnt lgkmcnt(0)")
    e("s_load_dword s42, s[40:41], 0")
    e("s_cmp_eq_u32 s3, 4\ns_cbranch_scc1 L_helper")
    if prio: e(f"s_setprio {prio}")
    srd(S_W, 32, "s7", 0x100000 - 8192 + 256)
    srd(S_X, 26, None, 2048)
    e("s_lshl_b32 s8, s3, 5\nv_add_u32 v7, s8, v2")
    e("v_lshlrev_b32 v8, 13, v7\nv_lshl_add_u32 v8, v3, 4, v8")
    e("v_lshl_add_u32 v9, v6, 2, v7\ns_lshl_b32 s8, s5, 7\nv_add_lshl_u32 v9, v9, s8, 1")
    e(f"buffer_load_ushort v30, v9, {S_X}, 0 offen")
    e("s_mov_b32 s73, 0")
    for i in range(8):
        e(f"buffer_load_dwordx4 {vr(64+4*i)}, v8, {S_W}, s73 offen {ldw}")
        if i < 7: e("s_add_u32 s73, s73, 32768")
    srd(S_W2, 22, "s7", 0x100000 - 8192 + 256)
    srd(S_OUT, 16, None, 2048)
    e(f"buffer_load_ushort v28, v9, {S_OUT}, 0 offen")
    e("s_lshl_b32 s7, s2, 20")
    srd(S_I, 28, "s7", 0x100000)
    srd(S_V, 30, "s7", 0x100000)
    srd(S_WS, 40, None, WSZ)
    e("s_lshl_b32 s8, s3, 10\nv_add_u32 v10, s8, v4")
    e("s_mov_b32 s43, 0\ns_mov_b32 s73, 0")
    ni = [0]
    def pace():
        d = Dp[ni[0] % len(Dp)]; ni[0] += 1
        e(f"s_waitcnt vmcnt({d-1})")
    def issue(slot):
        pace()
        e(f"buffer_load_dwordx4 {vr(128+4*slot)}, v10, {S_I}, s43 offen {ld}\ns_add_u32 s43, s43, 4096")
    for k in range(8): e(f"v_mov_b32 v{16+k}, 0\nv_mov_b32 v{48+k}, 0")
    def qdots(acc, x, w):
        e(f"v_lshlrev_b32 v{x+1}, 16, v{x}")
        for i in range(8):
            for k in range(8):
                e(f"v_dot2c_f32_bf16_dpp v{acc+k}, v{x+(k&1)}, v{w+4*i+(k>>1)} row_newbcast:{i} {DPPF}")
    for i in range(8):
        pace()
        e(f"buffer_load_dwordx4 {vr(96+4*i)}, v8, {S_W2}, s73 offen {ldw}\ns_add_u32 s73, s73, 32768")
        if i == Dmax - 1:
            e(f"s_waitcnt vmcnt({Dmax})")
            qdots(16, 30, 64)
    stamp(1)
    for i in range(Dmax): issue(i)
    e(f"s_waitcnt vmcnt({Dmax})")
    qdots(48, 28, 96)
    reduce_rows(16, 48)
    e("v_mov_b32 v18, v48\nv_mov_b32 v19, v49")
    e("s_lshl_b32 s8, s3, 10\nv_add_u32 v11, s8, v5")
    e(f"ds_write_b128 v11, v[16:19] offset:{L_RED1}\ns_waitcnt lgkmcnt(0)\ns_barrier")
    e("s_add_u32 s6, s42, 1\ns_and_b32 s6, s6, 0xff")
    for i in range(Dmax, 32): issue(i)
    ni[0] = 0
    stamp(2)
    e("s_barrier")
    e(f"v_lshlrev_b32 v12, 4, v3\nds_read_b128 v[24:27], v12 offset:{L_Q}")
    e(f"v_lshlrev_b32 v12, 2, v0\ns_lshl_b32 s8, s3, 12\nv_add_u32 v12, s8, v12\nv_mov_b32 v13, v12")
    e("v_mov_b32 v28, 0xff800000\ns_mov_b32 s15, 8\ns_waitcnt lgkmcnt(0)")
    stamp(3)
    e("L_k:")
    for g in range(2):
        for i in range(16):
            bfly_dots(i, 128 + 4 * (16 * g + i), 24); issue(16 * g + i); bfly_red(i, 43)
        e(f"ds_write_b32 v13, v43 offset:{L_SC + 256*g}\nv_max_f32 v28, v28, v43")
    e("v_add_u32 v13, 512, v13\ns_sub_u32 s15, s15, 1\ns_cmp_eq_u32 s15, 1")
    e("s_cselect_b32 s44, s48, s44\ns_cselect_b32 s45, s49, s45\ns_cselect_b32 s43, 0, s43")
    e("s_cmp_lg_u32 s15, 0\ns_cbranch_scc1 L_k")
    stamp(4)
    e("s_waitcnt lgkmcnt(0)")
    for g in range(16): e(f"ds_read_b32 v{64+g}, v12 offset:{L_SC + 256*g}")
    row_allred(28, "v_max_f32")
    rows_allred(28, 44, "v_max_f32")
    e("v_mul_f32 v44, s14, v28\ns_waitcnt lgkmcnt(0)")
    for g in range(16): e(f"v_fma_f32 v{64+g}, v{64+g}, s14, -v44")
    for g in range(16): e(f"v_exp_f32 v{64+g}, v{64+g}")
    for g in range(16): e(f"v_cvt_pk_bf16_f32 v{80+g}, v{64+g}, 0")
    for g in range(2, 16): e(f"ds_write_b32 v12, v{80+g} offset:{L_SC + 256*g}")
    for s in (8, 4, 2, 1):
        for g in range(s): e(f"v_add_f32 v{64+g}, v{64+g}, v{64+g+s}")
    e("v_mov_b32 v30, v80\nv_mov_b32 v46, v81\nv_add_u32 v13, 512, v12")
    for k in range(8): e(f"v_mov_b32 v{16+k}, 0")
    row_allred(64, "v_add_f32")
    rows_allred(64, 44, "v_add_f32")
    e(f"v_mov_b32 v29, v64\ns_lshl_b32 s8, s3, 3\nv_mov_b32 v44, s8\nv_mov_b32 v45, 1\ns_mov_b64 exec, 1")
    e(f"ds_write_b64 v44, v[28:29] offset:{L_MLW}\nds_add_u32 v1, v45 offset:{L_CNT}\ns_mov_b64 exec, -1\ns_mov_b32 s15, 7")
    def vstep(slot, i):
        for k in range(8):
            e(f"v_dot2c_f32_bf16_dpp v{16+k}, v{30+(k&1)}, v{128+4*slot+(k>>1)} row_newbcast:{br4(i)} {DPPF}")
    e("L_v:")
    for g in range(2):
        e("v_lshlrev_b32 v31, 16, v30")
        for i in range(16):
            vstep(16 * g + i, i); issue(16 * g + i)
        e(f"s_waitcnt lgkmcnt(0)\nv_mov_b32 v30, v46\nds_read_b32 v46, v13 offset:{L_SC + 256*g}")
    e(f"v_add_u32 v13, 512, v13\ns_sub_u32 s15, s15, 1\ns_cmp_lg_u32 s15, {7 - trig}\ns_cbranch_scc1 L_vnt")
    e(f"s_mov_b64 exec, 1\nds_add_u32 v1, v45 offset:{L_CNT+4}\ns_mov_b64 exec, -1\nL_vnt:")
    e("s_cmp_lg_u32 s15, 0\ns_cbranch_scc1 L_v")
    stamp(5)
    e("s_lshl_b32 s7, s4, 18\ns_lshl_b32 s8, s5, 8\ns_add_u32 s7, s7, s8")
    srd(S_W, 24, "s7", 0x40000 - 2048 + 256)
    srd(S_W2, 34, "s7", 0x40000 - 2048 + 256)
    e("s_lshl_b32 s8, s3, 5\nv_lshl_add_u32 v7, v2, 3, s8")
    e("v_lshlrev_b32 v8, 11, v7\nv_lshl_add_u32 v8, v3, 4, v8")
    for side, sr in ((0, S_W), (1, S_W2)):
        e("s_mov_b32 s73, 0")
        for i in range(8):
            e(f"buffer_load_dwordx4 {vr(64+32*side+4*i)}, v8, {sr}, s73 offen offset:{(i&1)*2048} {ldw}")
            if i & 1 and i < 7: e("s_add_u32 s73, s73, 4096")
    for g in range(2):
        e("v_lshlrev_b32 v31, 16, v30")
        for i in range(16):
            n = 16 * g + i
            if 31 - n < Dmax: e(f"s_waitcnt vmcnt({16 + 31 - n})")
            vstep(n, i)
        if g == 0: e("s_waitcnt lgkmcnt(0)\nv_mov_b32 v30, v46")
    stamp(6)
    reduce_rows(16)
    e(f"v_lshrrev_b32 v12, 1, v11\nds_write_b64 v12, v[16:17] offset:{L_RED3}\ns_waitcnt lgkmcnt(0)\ns_barrier")
    e(f"v_lshlrev_b32 v12, 1, v7\nds_read_b128 v[24:27], v12 offset:{L_OA}")
    e("s_cmp_lg_u32 s3, 0\ns_cbranch_scc1 L_nopub")
    e(f"v_lshrrev_b32 v12, 1, v4\nds_read_b128 v[52:55], v1 offset:{L_FW}")
    for w in range(4): e(f"ds_read_b64 v[{44+2*w}:{45+2*w}], v12 offset:{L_RED3 + 512*w}")
    e(f"s_lshl_b32 s8, s2, 9\ns_add_u32 s8, s8, {WS_PB}")
    e("s_waitcnt lgkmcnt(0)")
    e("v_mul_f32 v44, v52, v44\nv_mul_f32 v45, v52, v45")
    for w in range(1, 4): e(f"v_fmac_f32 v44, v{52+w}, v{44+2*w}\nv_fmac_f32 v45, v{52+w}, v{45+2*w}")
    tag(44, 45)
    e(f"buffer_store_dwordx2 v[44:45], v12, {S_WS}, s8 offen sc1")
    e("L_nopub:")
    stamp(7)
    e("v_lshlrev_b32 v13, 9, v6\nv_lshrrev_b32 v14, 3, v3\nv_lshl_add_u32 v14, v14, 2, v7\nv_lshl_add_u32 v14, v14, 2, v13")
    e(f"s_lshl_b32 s8, s4, 12\ns_add_u32 s9, s8, {WS_PB}")
    def ldsB(): e(f"buffer_load_dwordx4 v[48:51], v14, {S_WS}, s9 offen sc1")
    def amat():
        e("s_waitcnt vmcnt(1) lgkmcnt(0)")
        for side in range(2):
            for u in range(4):
                a = 64 + 32 * side + 8 * u
                for d in range(4):
                    e(f"v_perm_b32 v{128+32*side+8*u+2*d}, v{a+4+d}, v{a+d}, s74")
                    e(f"v_perm_b32 v{128+32*side+8*u+2*d+1}, v{a+4+d}, v{a+d}, s75")
        for k in range(8): e(f"v_mov_b32 v{16+k}, 0\nv_mov_b32 v{192+k}, 0")
        for u in range(4):
            for k in range(8): e(f"v_dot2c_f32_bf16 v{16+k}, v{24+u}, v{128+8*u+k}")
        reduce_rows(16)
    vals = (48, 49, 50, 51)
    poll(ldsB, list(vals), slp1, between=amat, mask='jj')
    stamp(8)
    untag(*vals)
    for pat in ("quad_perm:[1,0,3,2]", "quad_perm:[2,3,0,1]", "row_half_mirror"):
        for x in vals: e(f"v_add_f32_dpp v{x}, v{x}, v{x} {pat} {DPPF}")
    e("v_cvt_pk_bf16_f32 v30, v48, v49\nv_cvt_pk_bf16_f32 v31, v50, v51")
    for u in range(4):
        for k in range(8):
            e(f"v_dot2c_f32_bf16_dpp v{192+k}, v{30+(u&1)}, v{160+8*u+k} row_newbcast:{(u>>1)*8} {DPPF}")
    reduce_rows(192)
    e("v_mov_b32 v18, v192\nv_mov_b32 v19, v193")
    e(f"ds_write_b128 v11, v[16:19] offset:{L_RED4}\ns_waitcnt lgkmcnt(0)\ns_barrier")
    e("s_cmp_lg_u32 s3, 0\ns_cbranch_scc1 L_end")
    for w in range(4): e(f"ds_read_b128 {vr(44+4*w)}, v4 offset:{L_RED4 + 1024*w}")
    e(f"s_lshl_b32 s8, s2, 9\ns_add_u32 s8, s8, {WS_OA}\ns_add_u32 s9, s8, {WS_OB - WS_OA}\nv_lshrrev_b32 v12, 1, v4")
    e("s_waitcnt lgkmcnt(0)")
    for k in (2, 3, 0, 1):
        e(f"v_add_f32 v{44+k}, v{44+k}, v{48+k}\nv_add_f32 v{52+k}, v{52+k}, v{56+k}")
    for k in (2, 3, 0, 1): e(f"v_add_f32 v{44+k}, v{44+k}, v{52+k}")
    tag(46, 47, 44, 45)
    e(f"buffer_store_dwordx2 v[46:47], v12, {S_WS}, s9 offen sc1")
    e(f"buffer_store_dwordx2 v[44:45], v12, {S_WS}, s8 offen sc1")
    stamp(9)
    def dump(first, n):
        e("s_mov_b64 exec, 1\ns_waitcnt lgkmcnt(0)")
        e(f"s_lshl_b32 s8, s2, 7\ns_add_u32 s8, s8, 0x20000000")
        for k in range(first, first + n):
            e(f"v_mov_b32 v{100+2*k}, s{80+2*(k-first)}\nv_mov_b32 v{101+2*k}, s{81+2*(k-first)}")
            e(f"buffer_store_dwordx2 v[{100+2*k}:{101+2*k}], v1, {S_WS}, s8 offen offset:{8*k}")
    e("s_cmp_ge_u32 s4, 8\ns_cbranch_scc1 L_fin")
    e("v_lshrrev_b32 v13, 3, v0\nv_lshlrev_b32 v13, 12, v13\nv_and_b32 v14, 7, v0\nv_lshl_add_u32 v13, v14, 4, v13")
    e(f"s_lshr_b32 s7, s4, 2\ns_mul_i32 s9, s7, {WS_OB - WS_OA}\ns_lshl_b32 s8, s5, 9\ns_add_u32 s9, s9, s8")
    e(f"s_and_b32 s77, s4, 3\ns_lshl_b32 s8, s77, 7\ns_add_u32 s9, s9, s8\ns_add_u32 s9, s9, {WS_OA}")
    e("s_add_u32 s78, s9, 32768\ns_add_u32 s79, s9, 65536\ns_add_u32 s73, s9, 98304")
    srd(S_OUT, 36, None, 4096)
    e("s_lshl_b32 s7, s7, 11\ns_lshl_b32 s8, s5, 8\ns_add_u32 s7, s7, s8\ns_lshl_b32 s8, s77, 6\ns_add_u32 s7, s7, s8\nv_lshl_add_u32 v14, v14, 3, s7")
    def ldsF():
        for k, so in enumerate(("s9", "s78", "s79", "s73")):
            e(f"buffer_load_dwordx4 {vr(48+4*k)}, v13, {S_WS}, {so} offen sc1")
    poll(ldsF, list(range(48, 64)), slp2, mask='byte')
    untag(*range(48, 64))
    for k in range(4): e(f"v_add_f32 v{48+k}, v{48+k}, v{52+k}\nv_add_f32 v{56+k}, v{56+k}, v{60+k}")
    for k in range(4): e(f"v_add_f32 v{48+k}, v{48+k}, v{56+k}")
    for x in vals: e(f"v_add_f32_dpp v{x}, v{x}, v{x} row_ror:8 {DPPF}")
    e("v_permlane32_swap_b32 v48, v50\nv_permlane32_swap_b32 v49, v51\nv_add_f32 v48, v48, v50\nv_add_f32 v49, v49, v51")
    e("v_mov_b32 v50, v48\nv_mov_b32 v51, v49\nv_permlane16_swap_b32 v48, v50\nv_permlane16_swap_b32 v49, v51\nv_add_f32 v48, v48, v50\nv_add_f32 v49, v49, v51")
    e("v_cvt_pk_bf16_f32 v52, v48, v49\nv_lshrrev_b32 v53, 5, v0\nv_lshl_add_u32 v14, v53, 2, v14")
    e("s_mov_b32 exec_lo, 0xff\ns_mov_b32 exec_hi, 0xff")
    e(f"buffer_store_dword v52, v14, {S_OUT}, 0 offen")
    e("s_cmp_lg_u32 s2, 0\ns_cbranch_scc1 L_fin")
    e(f"s_mov_b64 exec, 1\ns_add_u32 s42, s42, 1\nv_mov_b32 v46, s42\nbuffer_store_dword v46, v1, {S_WS}, 0 offen sc1")
    e("L_fin:")
    if prof:
        e("s_memrealtime s[100:101]")
        dump(0, 10)
        e("v_mov_b32 v44, s100\nv_mov_b32 v45, s101")
        e(f"buffer_store_dwordx2 v[44:45], v1, {S_WS}, s8 offen offset:80")
        e("s_getreg_b32 s7, hwreg(HW_REG_XCC_ID)\ns_getreg_b32 s9, hwreg(HW_REG_HW_ID)\nv_mov_b32 v46, s9\nv_mov_b32 v47, s7")
        e(f"buffer_store_dwordx2 v[46:47], v1, {S_WS}, s8 offen offset:120")
    e("s_branch L_end")

    e("L_helper:")
    if prof: e("s_mov_b64 s[82:83], 0\ns_mov_b64 s[84:85], 0")
    srd(S_WS, 40, None, WSZ)
    e(f"v_mov_b32 v16, 0\nv_mov_b32 v17, 0\nds_write_b64 v1, v[16:17] offset:{L_CNT}")
    e("v_lshrrev_b32 v11, 1, v4\nv_lshlrev_b32 v12, 2, v0")
    e("s_waitcnt lgkmcnt(0)")
    e("s_add_u32 s6, s42, 1\ns_and_b32 s6, s6, 0xff")
    e(f"s_lshl_b32 s8, s2, 9\ns_add_u32 s8, s8, {WS_QB}\ns_add_u32 s7, s8, {WS_QA - WS_QB}")
    e(f"s_lshl_b32 s9, s4, 12\ns_add_u32 s9, s9, {WS_QB}")
    e("s_barrier")
    for w in range(4): e(f"ds_read_b128 {vr(44+4*w)}, v4 offset:{L_RED1 + 1024*w}")
    e("s_waitcnt lgkmcnt(0)")
    for k in range(4): e(f"v_add_f32 v{44+k}, v{44+k}, v{48+k}\nv_add_f32 v{52+k}, v{52+k}, v{56+k}")
    for k in range(4): e(f"v_add_f32 v{44+k}, v{44+k}, v{52+k}")
    tag(44, 45, 46, 47)
    e(f"buffer_store_dwordx2 v[44:45], v11, {S_WS}, s8 offen sc1")
    e(f"buffer_store_dwordx2 v[46:47], v11, {S_WS}, s7 offen sc1")
    def gather4k(base, so):
        for k in range(4): e(f"buffer_load_dwordx4 {vr(base+4*k)}, v4, {S_WS}, {so} offen offset:{k*1024} sc1")
    def sum4k(base, out):
        untag(*range(base, base + 16))
        for k in range(4): e(f"v_add_f32 v{base+k}, v{base+k}, v{base+4+k}\nv_add_f32 v{base+8+k}, v{base+8+k}, v{base+12+k}")
        for k in range(4): e(f"v_add_f32 v{base+k}, v{base+k}, v{base+8+k}")
        for k in range(4): e(f"v_mov_b32 v{base+4+k}, v{base+k}")
        for k in range(4): e(f"v_permlane32_swap_b32 v{base+k}, v{base+4+k}")
        for k in range(4): e(f"v_add_f32 v{base+k}, v{base+k}, v{base+4+k}")
        e(f"v_cvt_pk_bf16_f32 v{out}, v{base}, v{base+1}\nv_cvt_pk_bf16_f32 v{out+1}, v{base+2}, v{base+3}")
    poll(lambda: gather4k(64, "s9"), list(range(64, 80)), 0)
    sum4k(64, 44)
    stamp(0)
    e(f"v_and_b32 v13, 31, v0\nv_lshlrev_b32 v13, 3, v13\nds_write_b64 v13, v[44:45] offset:{L_Q}\ns_waitcnt lgkmcnt(0)\ns_barrier")
    e("s_and_b32 s8, s4, 7\ns_cmp_lg_u32 s8, s5\ns_cbranch_scc1 L_noattA")
    if noA: e("s_branch L_noattA")
    e(f"s_lshr_b32 s78, s4, 3\ns_lshl_b32 s9, s78, 15\ns_add_u32 s9, s9, {WS_QA}")
    e("s_mov_b32 s15, 4")
    e("L_qa:")
    e("s_add_u32 s77, s9, 4096")
    poll(lambda: (gather4k(64, "s9"), gather4k(80, "s77")), list(range(64, 96)), 8)
    sum4k(64, 44); sum4k(80, 46)
    e(f"ds_write_b64 v13, v[44:45] offset:{L_QA}\nds_write_b64 v13, v[46:47] offset:{L_QA+256}\nv_add_u32 v13, 512, v13")
    e("s_add_u32 s9, s9, 8192\ns_sub_u32 s15, s15, 1\ns_cmp_lg_u32 s15, 0\ns_cbranch_scc1 L_qa")
    e(f"s_lshl_b32 s7, s78, 23\ns_lshl_b32 s8, s5, 17\ns_add_u32 s7, s7, s8\ns_add_u32 s7, s7, {28672*256}")
    srd(S_I, 18, "s7", 0x20000)
    srd(S_V, 20, "s7", 0x20000)
    e("v_lshlrev_b32 v13, 4, v3\ns_waitcnt lgkmcnt(0)")
    for hh in range(8): e(f"ds_read_b128 {vr(192+4*hh)}, v13 offset:{L_QA + 256*hh}")
    e("s_mov_b32 s43, 0\ns_mov_b32 s72, 0")
    def issueAK(i):
        e(f"s_waitcnt vmcnt({DA-1})\nbuffer_load_dwordx4 {vr(128+4*i)}, v4, {S_I}, s43 offen offset:{(i&3)*1024} {ld}")
        if i & 3 == 3: e("s_add_u32 s43, s43, 4096")
    def issueAV(i):
        e(f"s_waitcnt vmcnt({DA-1})\nbuffer_load_dwordx4 {vr(160+4*i)}, v4, {S_V}, s72 offen offset:{(i&3)*1024} {ld}")
        if i & 3 == 3: e("s_add_u32 s72, s72, 4096")
    for i in range(8): issueAK(i)
    for i in range(8): issueAV(i)
    for k in range(64): e(f"v_mov_b32 v{64+k}, 0")
    e("v_mov_b32 v28, 0xff800000\nv_mov_b32 v29, 0\ns_mov_b32 s15, 16\ns_waitcnt lgkmcnt(0)")
    stamp(1)
    e("L_attA:")
    for u in range(4):
        for i in range(16):
            bfly_dots(i, 128 + 4 * (2 * u + (i & 1)), 192 + 4 * br3(i >> 1)); bfly_red(i, 224 + u)
        issueAK(2 * u); issueAK(2 * u + 1)
    e("v_max3_f32 v44, v224, v225, v226\nv_max3_f32 v44, v44, v227, v28")
    e(f"v_max_f32_dpp v44, v44, v44 row_ror:8 {DPPF}")
    e("v_sub_f32 v45, v28, v44\nv_mov_b32 v28, v44\nv_mul_f32 v45, s14, v45\nv_exp_f32 v45, v45")
    for u in range(4): e(f"v_sub_f32 v{224+u}, v{224+u}, v44")
    for u in range(4): e(f"v_mul_f32 v{224+u}, s14, v{224+u}")
    for u in range(4): e(f"v_exp_f32 v{224+u}, v{224+u}")
    e("v_mul_f32 v29, v45, v29")
    for u in range(4): e(f"v_mov_b32_dpp v{228+u}, v{224+u} row_ror:8 {DPPF}")
    for u in range(4): e(f"v_add_f32 v29, v29, v{224+u}")
    for u in range(4): e(f"v_cvt_pk_bf16_f32 v{228+u}, v{224+u}, v{228+u}")
    for hh in range(8):
        for k in range(8): e(f"v_mul_f32_dpp v{64+8*hh+k}, v45, v{64+8*hh+k} row_newbcast:{hh} {DPPF}")
    for u in range(4):
        a = 160 + 8 * u
        for d in range(4):
            e(f"v_perm_b32 v{232+2*d}, v{a+4+d}, v{a+d}, s74\nv_perm_b32 v{233+2*d}, v{a+4+d}, v{a+d}, s75")
        issueAV(2 * u); issueAV(2 * u + 1)
        for hh in range(8):
            for k in range(8):
                e(f"v_dot2c_f32_bf16_dpp v{64+8*hh+k}, v{228+u}, v{232+k} row_newbcast:{hh} {DPPF}")
    e("s_sub_u32 s15, s15, 1\ns_cmp_lg_u32 s15, 0\ns_cbranch_scc1 L_attA")
    e("v_mov_b32 v44, v28")
    rows_allred(44, 45, "v_max_f32")
    e("v_and_b32 v44, v15, v44\nv_sub_f32 v46, v28, v44\nv_mul_f32 v46, s14, v46\nv_exp_f32 v46, v46")
    e("v_mul_f32 v29, v46, v29")
    e(f"v_add_f32_dpp v29, v29, v29 row_ror:8 {DPPF}")
    rows_allred(29, 45, "v_add_f32")
    e(f"s_lshl_b32 s8, s78, 16\ns_lshl_b32 s9, s5, 10\ns_add_u32 s8, s8, s9\ns_add_u32 s8, s8, {WS_PA}\ns_mov_b32 s9, s8\nv_lshrrev_b32 v14, 1, v5")
    for hh in range(8):
        a = 64 + 8 * hh
        for k in range(8): e(f"v_mul_f32_dpp v{a+k}, v46, v{a+k} row_newbcast:{hh} {DPPF}")
        reduce_rows(a)
        tag(a, a + 1)
        e(f"buffer_store_dwordx2 v[{a}:{a+1}], v14, {S_WS}, s9 offen sc1\ns_add_u32 s9, s9, 8192")
    e("v_mov_b32 v45, v29\nv_lshlrev_b32 v13, 13, v0")
    tag(44, 45)
    e(f"s_mov_b64 exec, 0xff\nbuffer_store_dwordx2 v[44:45], v13, {S_WS}, s8 offen offset:512 sc1\ns_mov_b64 exec, -1")
    stamp(2)
    e("L_noattA:")
    ldswait(L_CNT, 4, 16)
    e(f"ds_read_b128 v[16:19], v1 offset:{L_MLW}\nds_read_b128 v[20:23], v1 offset:{L_MLW+16}\ns_waitcnt lgkmcnt(0)")
    e("v_max3_f32 v44, v16, v18, v20\nv_max_f32 v44, v44, v22\nv_and_b32 v44, v15, v44")
    for w in range(4): e(f"v_sub_f32 v{48+w}, v{16+2*w}, v44")
    for w in range(4): e(f"v_mul_f32 v{48+w}, s14, v{48+w}")
    for w in range(4): e(f"v_exp_f32 v{48+w}, v{48+w}")
    e("v_mul_f32 v45, v48, v17\nv_fmac_f32 v45, v49, v19\nv_fmac_f32 v45, v50, v21\nv_fmac_f32 v45, v51, v23")
    tag(44, 45)
    e(f"s_lshl_b32 s8, s2, 7\ns_add_u32 s8, s8, {WS_ML}\ns_mov_b64 exec, 1")
    e(f"buffer_store_dwordx2 v[44:45], v1, {S_WS}, s8 offen sc1\ns_mov_b64 exec, -1")
    ldswait(L_CNT + 4, 4, 16)
    e(f"s_lshl_b32 s9, s4, 13\ns_add_u32 s9, s9, {WS_PA}\ns_add_u32 s77, s9, 4096\nv_lshlrev_b32 v13, 10, v6\nv_lshlrev_b32 v14, 7, v6")
    e(f"s_lshl_b32 s7, s4, 10\ns_add_u32 s7, s7, {WS_ML}")
    def ldPA():
        e(f"buffer_load_dwordx2 v[60:61], v14, {S_WS}, s7 offen sc1")
        if noA: return
        e(f"buffer_load_dwordx2 v[62:63], v13, {S_WS}, s9 offen offset:512 sc1")
        for k in range(8):
            e(f"buffer_load_dwordx2 v[{64+2*k}:{65+2*k}], v11, {S_WS}, {'s9' if k < 4 else 's77'} offen offset:{(k&3)*1024} sc1")
    poll(ldPA, list(range(60, 62 if noA else 80)), 8)
    untag(*range(60, 80))
    def weights(M, L, w, t, mx):
        e(f"v_mov_b32 v{mx}, v{M}")
        red8(mx, "v_max_f32")
        e(f"v_sub_f32 v{w}, v{M}, v{mx}\nv_mul_f32 v{w}, s14, v{w}\nv_exp_f32 v{w}, v{w}")
        e(f"v_mul_f32 v{t}, v{w}, v{L}")
        red8(t, "v_add_f32")
        e(f"v_rcp_f32 v{t}, v{t}")
    weights(60, 61, 56, 57, 58)
    for w in range(4): e(f"v_sub_f32 v{48+w}, v{16+2*w}, v58")
    for w in range(4): e(f"v_mul_f32 v{48+w}, s14, v{48+w}")
    for w in range(4): e(f"v_exp_f32 v{48+w}, v{48+w}")
    for w in range(4): e(f"v_mul_f32 v{48+w}, v57, v{48+w}")
    e(f"s_mov_b64 exec, 1\nds_write_b128 v1, v[48:51] offset:{L_FW}\ns_mov_b64 exec, -1")
    weights(62, 63, 56, 57, 58)
    e("v_mul_f32 v56, v56, v57\nv_mov_b32 v44, 0\nv_mov_b32 v45, 0")
    for k in range(8):
        e(f"v_fmac_f32_dpp v44, v56, v{64+2*k} row_newbcast:{k} {DPPF}\nv_fmac_f32_dpp v45, v56, v{65+2*k} row_newbcast:{k} {DPPF}")
    e(f"v_cvt_pk_bf16_f32 v44, v44, v45\nds_write_b32 v12, v44 offset:{L_OA}")
    if prof:
        stamp(3)
        dump(11, 4)
    e("s_waitcnt lgkmcnt(0)")
    e("L_end:\ns_endpgm")
    e.fix()
    asm = header([f"; @launch grid=(256,1,1) block=(320,1,1) lds={L_END}"]) + kstart() + e.text() + ".section .rodata,\"a\"\n" + kdesc(vgpr=256, sgpr=102)
    return asm, f"256:320:{L_END}"

if __name__ == "__main__":
    os.makedirs("k", exist_ok=True)
    specs = []
    for cfg in json.loads(sys.argv[1]):
        name = "k/k2" + "".join(f"_{k}{str(v).replace(' ','')}" for k, v in cfg.items())
        asm, g = gen(**cfg)
        build(asm, name)
        specs.append(f"work/{name}.co:{g}")
    open("specs.txt", "w").write(" ".join(specs) + "\n")
    print(json.dumps(["work/bench", "work/specs.txt"] + [s.split(":")[0] for s in specs]))
```

```python
from common import *
from asmlib import Asm
import struct, json

def fbits(x): return "0x%08x" % struct.unpack("<I", struct.pack("<f", x))[0]
SC = 128 ** -0.5 * 1.4426950408889634
WS_QB, WS_QA, WS_PA, WS_PB, WS_OA, WS_OB, WS_ML, WS_END = 0x10000, 0x30000, 0x50000, 0x90000, 0xC0000, 0xE0000, 0x100000, 0x1C0000
WS_F = 0x180000 - WS_OA
L_RED1, L_Q, L_OA, L_MLW, L_FW, L_CNT, L_N, L_TW, L_QA, L_RED3, L_RED4, L_SC, L_END = 0, 4096, 4352, 4608, 4640, 4656, 4688, 4704, 5120, 7168, 9216, 13312, 29696
L_T2 = 4944
C_PASS, C_QP, C_ML, C_QRDY, C_FAST = L_CNT, L_CNT + 4, L_CNT + 8, L_CNT + 12, L_CNT + 16
S_K, S_V, S_W, S_W2, S_WS, S_X, S_OUT = "s[44:47]", "s[48:51]", "s[52:55]", "s[56:59]", "s[60:63]", "s[64:67]", "s[68:71]"
DPPF = "row_mask:0xf bank_mask:0xf"
def br(i, n): return int(format(i, f"0{n}b")[::-1], 2)
def vr(a, n=4): return f"v[{a}:{a+n-1}]"

DOC = """
;
; Hand-offs between workgroups go through d_ws; every word carries a launch tag in its low byte (launch number read from
"""

def gen(D=5, D0=6, DA=16, DW=7, nA0=4, DWA=8, prof=0, prio=2, spin=2000000, ctl=1, G=14, GI=0, bias=-4, cks="5,8,10,12", lim=32,
        pac=10, pslp=24, nrd=4, fast="nt", touch=1, perm=0, lateb=1, slp1=0, probe=0, nosc1=0, cpf=0, kst=0, ld='nt', jit=0, jm=15, ab=-14, diag=0, dref=7600, q1=12, cmask=1, G2=0, P2=16, ftries=50000, ilv=0, spr=0, sprn=0, biasV=-9, pipe=0, jp='16-21-14', xa=-1, xb=-1, dg='2-0-2', pf=0, tp=None, sw='16.3-14.2', apat=1, aburst=1, cap=8, qp='0-1-6-7-2-3-4-5'):
    e = Asm()
    cl = [int(c) for c in cks.split(",")] if ctl else []
    JP = [int(x) for x in jp.split("-")]
    TP = [int(x) for x in tp.split("-")] if tp else [b for b in range(12, 23) if b not in JP]
    assert sorted(JP + TP) == list(range(12, 23))
    SW = [tuple(int(y) for y in x.split(".")) for x in sw.split("-")] if sw else []
    DG = dict(zip([c for c in cl if c != 8], [int(x) for x in dg.split("-")])) if dg else {}
    def jbits(dst):
        e(f"s_mov_b32 {dst}, 0")
        for src, wb, ab_ in [("s5", k, JP[k]) for k in range(3)] + [("s2", w, a_) for w, a_ in ((xa, 13), (xb, 12)) if w >= 0]:
            e(f"s_bfe_u32 s8, {src}, {hex(0x10000 + wb)}\ns_lshl_b32 s8, s8, {ab_}\ns_xor_b32 {dst}, {dst}, s8")
    def nextpass():
        e("s_add_u32 s26, s26, 1\ns_mov_b32 s27, s28")
        for k in range(3): e(f"s_bfe_u32 s8, s26, {hex(0x10000 + k)}\ns_lshl_b32 s8, s8, {TP[5+k]}\ns_or_b32 s27, s27, s8")
    DM = (cap or D + 1) if ctl else D
    WSZ = 0x20100000 if prof == 1 else WS_END
    lab = [0]
    def stamp(k):
        if prof or (diag and k in (0, diag)): e(f"s_memrealtime s[{80+2*k}:{81+2*k}]")
    def dump(first, n):
        e("s_mov_b64 exec, 1\ns_waitcnt lgkmcnt(0)")
        e(f"s_lshl_b32 s8, s2, 7\ns_add_u32 s8, s8, 0x20000000")
        for k in range(first, first + n):
            e(f"v_mov_b32 v{100+2*k}, s{80+2*(k-first)}\nv_mov_b32 v{101+2*k}, s{81+2*(k-first)}")
            e(f"buffer_store_dwordx2 v[{100+2*k}:{101+2*k}], v1, {S_WS}, s8 offen offset:{8*k}")
    def srd(name, base, off_sgpr, size):
        n = int(name[2:name.index(":")])
        if off_sgpr is None: e(f"s_mov_b32 s{n}, s{base}\ns_mov_b32 s{n+1}, s{base+1}")
        else: e(f"s_add_u32 s{n}, s{base}, {off_sgpr}\ns_addc_u32 s{n+1}, s{base+1}, 0")
        e(f"s_mov_b32 s{n+2}, {size}\ns_mov_b32 s{n+3}, 0x20000")
    def reduce_rows(*accs):
        for a in accs:
            for k in range(4): e(f"v_permlane32_swap_b32 v{a+k}, v{a+k+4}")
        for a in accs:
            for k in range(4): e(f"v_add_f32 v{a+k}, v{a+k}, v{a+k+4}")
        for a in accs:
            for k in range(2): e(f"v_permlane16_swap_b32 v{a+k}, v{a+k+2}")
        for a in accs:
            for k in range(2): e(f"v_add_f32 v{a+k}, v{a+k}, v{a+k+2}")
    def rows_allred(x, t, op):
        e(f"v_mov_b32 v{t}, v{x}\nv_permlane32_swap_b32 v{x}, v{t}\n{op} v{x}, v{x}, v{t}")
        e(f"v_mov_b32 v{t}, v{x}\nv_permlane16_swap_b32 v{x}, v{t}\n{op} v{x}, v{x}, v{t}")
    def row_allred(x, op):
        for n in (8, 4, 2, 1): e(f"{op}_dpp v{x}, v{x}, v{x} row_ror:{n} {DPPF}")
    PAT8 = ("quad_perm:[1,0,3,2]", "quad_perm:[2,3,0,1]", "row_half_mirror")
    def red8(x, op):
        for p in PAT8: e(f"{op}_dpp v{x}, v{x}, v{x} {p} {DPPF}")
    def tag(*regs):
        for x in regs: e(f"v_and_or_b32 v{x}, v{x}, v15, s6")
    def untag(*regs):
        for x in regs: e(f"v_and_b32 v{x}, v{x}, v15")
    PS, L1, L2, L3, TA, TB = (32, 33), (34, 35), (36, 37), (38, 39), 40, 41
    def bfly_dots(i, kreg, qreg):
        ps = PS[i & 1]
        e(f"v_dot2_f32_bf16 v{ps}, v{kreg}, v{qreg}, 0")
        for d in range(1, 4): e(f"v_dot2_f32_bf16 v{ps}, v{kreg+d}, v{qreg+d}, v{ps}")
    def bfly_red(i, out):
        if i & 1:
            t = L1[(i >> 1) & 1]
            e(f"v_add_f32_dpp v{t}, v{PS[0]}, v{PS[0]} row_ror:8 row_mask:0xf bank_mask:0x3")
            e(f"v_add_f32_dpp v{t}, v{PS[1]}, v{PS[1]} row_ror:8 row_mask:0xf bank_mask:0xc")
        if i & 3 == 3:
            t = L2[(i >> 2) & 1]
            e(f"v_add_f32_dpp v{t}, v{L1[0]}, v{L1[0]} row_shl:4 row_mask:0xf bank_mask:0x5")
            e(f"v_add_f32_dpp v{t}, v{L1[1]}, v{L1[1]} row_shr:4 row_mask:0xf bank_mask:0xa")
        if i & 7 == 7:
            t = L3[(i >> 3) & 1]
            e(f"v_add_f32_dpp v{TA}, v{L2[0]}, v{L2[0]} quad_perm:[2,3,0,1] {DPPF}")
            e(f"v_add_f32_dpp v{TB}, v{L2[1]}, v{L2[1]} quad_perm:[2,3,0,1] {DPPF}")
            e(f"v_cndmask_b32 v{t}, v{TA}, v{TB}, s[10:11]")
        if i == 15:
            e(f"v_add_f32_dpp v{TA}, v{L3[0]}, v{L3[0]} quad_perm:[1,0,3,2] {DPPF}")
            e(f"v_add_f32_dpp v{TB}, v{L3[1]}, v{L3[1]} quad_perm:[1,0,3,2] {DPPF}")
            e(f"v_cndmask_b32 v{out}, v{TA}, v{TB}, s[12:13]")
    def tagcheck(regs):
        pairs = [regs[i:i+2] for i in range(0, len(regs), 2)]
        e(f"v_bitop3_b32 v42, v{pairs[0][0]}, v{pairs[0][1]}, s6 bitop3:0x7e")
        rest = pairs[1:]
        while rest:
            (a, b) = rest.pop(0)
            e(f"v_bitop3_b32 v43, v{a}, v{b}, s6 bitop3:0x7e")
            if rest:
                (a, b) = rest.pop(0)
                e(f"v_bitop3_b32 v41, v{a}, v{b}, s6 bitop3:0x7e\nv_or3_b32 v42, v42, v43, v41")
            else: e("v_or_b32 v42, v42, v43")
        e("v_and_b32 v42, 0xff, v42\nv_cmp_ne_u32 vcc, 0, v42")
    def remask(mask):
        if mask == "jj":
            e("s_or_b32 s7, vcc_lo, vcc_hi\ns_lshr_b32 s8, s7, 16\ns_or_b32 s7, s7, s8\ns_lshr_b32 s8, s7, 8\ns_or_b32 s7, s7, s8")
            e("s_and_b32 s7, s7, 0xff\ns_mul_i32 s7, s7, 0x01010101\ns_mov_b32 exec_lo, s7\ns_mov_b32 exec_hi, s7")
        if mask == "byte":
            for sh in (4, 2, 1): e(f"s_lshr_b64 s[16:17], vcc, {sh}\ns_or_b64 vcc, vcc, s[16:17]")
            e("s_and_b32 s7, vcc_lo, 0x01010101\ns_and_b32 s8, vcc_hi, 0x01010101\ns_mul_i32 exec_lo, s7, 0xff\ns_mul_i32 exec_hi, s8, 0xff")
    def poll(loads, regs, sleep, mask=None, tries=None, giveup=None, first=False):
        n = lab[0]; lab[0] += 1
        e(f"s_mov_b32 s76, {tries or spin}\nL_poll{n}:")
        if first: e(f"s_sleep {sleep}")
        loads()
        e("s_waitcnt vmcnt(0)")
        tagcheck(regs)
        e(f"s_cmp_eq_u64 vcc, 0\ns_cbranch_scc1 L_polld{n}\ns_sub_u32 s76, s76, 1\ns_cbranch_scc1 {giveup or f'L_polld{n}'}")
        remask(mask)
        if sleep and not first: e(f"s_sleep {sleep}")
        e(f"s_branch L_poll{n}\nL_polld{n}:")
        if mask: e("s_mov_b64 exec, -1")
    def ldswait(off, val, sleep):
        n = lab[0]; lab[0] += 1
        e(f"s_mov_b32 s76, {spin}\nL_lw{n}:\nds_read_b32 v42, v1 offset:{off}\ns_waitcnt lgkmcnt(0)\nv_readfirstlane_b32 s8, v42")
        e(f"s_cmp_ge_u32 s8, {val}\ns_cbranch_scc1 L_lwd{n}\ns_sub_u32 s76, s76, 1\ns_cbranch_scc1 L_lwd{n}\ns_sleep {sleep}\ns_branch L_lw{n}\nL_lwd{n}:")
    jp = [0]
    def jitter(mask=None):
        if not jit: return
        jp[0] += 1; n = lab[0]; lab[0] += 1
        e(f"s_lshl_b32 s98, s2, 3\ns_add_u32 s98, s98, s3\ns_add_u32 s98, s98, {jp[0]*7919 + jit*104729}\ns_mul_i32 s98, s98, 0x9E3779B1\ns_lshr_b32 s99, s98, 15\ns_xor_b32 s98, s98, s99")
        e(f"s_mul_i32 s98, s98, 0x85EBCA6B\ns_lshr_b32 s98, s98, 20\ns_and_b32 s99, s98, 0x700\ns_cmp_lg_u32 s99, 0\ns_cbranch_scc1 L_jd{n}\ns_and_b32 s98, s98, {mask or jm}")
        e(f"L_j{n}:\ns_sleep 32\ns_sub_u32 s98, s98, 1\ns_cbranch_scc0 L_j{n}\nL_jd{n}:")
    def mktag(): e("s_add_u32 s6, s42, 1\ns_and_b32 s6, s6, 0xff")

    e("s_cmp_ge_u32 s2, 256\ns_cbranch_scc1 L_end")
    if perm == 1: e("s_lshr_b32 s3, s2, 3\ns_and_b32 s2, s2, 7\ns_lshl_b32 s2, s2, 5\ns_or_b32 s2, s2, s3")
    if perm == 2: e("s_bfe_u32 s3, s2, 0x10004\ns_xor_b32 s2, s2, s3\ns_bfe_u32 s3, s2, 0x10001\ns_lshl_b32 s3, s3, 3\ns_xor_b32 s2, s2, s3")
    stamp(0)
    e("s_load_dwordx16 s[16:31], s[0:1], 0\ns_load_dwordx8 s[32:39], s[0:1], 64\ns_load_dwordx2 s[40:41], s[0:1], 96")
    e("v_lshrrev_b32 v1, 6, v0\nv_and_b32 v0, 63, v0\nv_readfirstlane_b32 s3, v1")
    e("v_lshrrev_b32 v2, 4, v0\nv_and_b32 v3, 15, v0\nv_and_b32 v6, 7, v0\nv_mov_b32 v1, 0")
    e("s_lshr_b32 s4, s2, 3\ns_and_b32 s5, s2, 7")
    e("s_lshr_b32 s9, s5, 1\ns_lshl_b32 s7, s9, 21\ns_lshl_b32 s8, s4, 8\ns_add_u32 s7, s7, s8")
    QP = [int(x) for x in qp.split("-")]
    if QP == [0, 1, 6, 7, 2, 3, 4, 5]:
        e("s_lshl_b32 s8, s3, 6\nv_add_u32 v7, s8, v2\nv_lshlrev_b32 v8, 13, v7\nv_lshl_add_u32 v8, v3, 4, v8")
        e("v_lshl_add_u32 v9, v3, 2, v7\ns_lshl_b32 s8, s9, 8\nv_add_lshl_u32 v9, v9, s8, 1")
    else:
        e(f"s_and_b32 s8, s3, 1\ns_lshl_b32 s8, s8, {QP[2]}\ns_bfe_u32 s73, s3, 0x10001\ns_lshl_b32 s73, s73, {QP[3]}\ns_or_b32 s8, s8, s73")
        e(f"v_and_b32 v7, 1, v2\nv_lshlrev_b32 v7, {QP[0]}, v7\nv_lshrrev_b32 v8, 1, v2\nv_lshl_or_b32 v7, v8, {QP[1]}, v7\nv_or_b32 v7, s8, v7")
        e("v_lshlrev_b32 v8, 13, v7\nv_lshl_add_u32 v8, v3, 4, v8\nv_mov_b32 v9, v7")
        for k in range(4): e(f"v_bfe_u32 v10, v3, {k}, 1\nv_lshl_or_b32 v9, v10, {QP[4+k]}, v9")
        e("s_lshl_b32 s8, s9, 8\nv_add_lshl_u32 v9, v9, s8, 1")
    e("s_mov_b32 s54, 0x1fe100\ns_mov_b32 s55, 0x20000\ns_mov_b32 s66, 2048\ns_mov_b32 s67, 0x20000\ns_mov_b32 s73, 0")
    def consts():
        e("s_mov_b32 s10, 0xcccccccc\ns_mov_b32 s11, 0xcccccccc\ns_mov_b32 s12, 0xaaaaaaaa\ns_mov_b32 s13, 0xaaaaaaaa")
        e(f"s_mov_b32 s14, {fbits(SC)}\ns_mov_b32 s74, 0x05040100\ns_mov_b32 s75, 0x07060302")
        e("v_lshlrev_b32 v4, 4, v0\nv_lshl_add_u32 v5, v3, 2, v2\nv_lshlrev_b32 v5, 4, v5\nv_mov_b32 v15, 0xffffff00")
    jitter()
    e("s_cmp_ge_u32 s3, 4\ns_cbranch_scc1 L_side")
    e("s_waitcnt lgkmcnt(0)")
    if kst: stamp(2)
    e("s_bitcmp1_b32 s5, 0\ns_cselect_b64 s[52:53], s[22:23], s[32:33]\ns_cselect_b64 s[64:65], s[16:17], s[26:27]")
    e("s_add_u32 s52, s52, s7\ns_addc_u32 s53, s53, 0")
    e(f"buffer_load_ushort v30, v9, {S_X}, 0 offen")
    def issue(slot, srd_, d=None):
        if d is None and ctl:
            c = lab[0]; lab[0] += 1; t = br(slot, 5)
            if cap: e(f"s_waitcnt vmcnt({cap-1})\ns_cmp_lt_i32 s72, {-32-t}\ns_cbranch_scc1 L_f{c}")
            e(f"s_waitcnt vmcnt({D})\ns_cmp_lt_i32 s72, {-t}\ns_cbranch_scc1 L_f{c}\ns_waitcnt vmcnt({D-1})\ns_cmp_le_i32 s72, {t}\ns_cbranch_scc1 L_f{c}\ns_waitcnt vmcnt({D-2})\nL_f{c}:")
        else: e(f"s_waitcnt vmcnt({(d or D)-1})")
        e(f"buffer_load_dwordx4 {vr(128+4*slot)}, v10, {srd_}, s43 offen {ld}")
        if slot == 31: nextpass()
        lo = sum(((((slot + 1) & 31) >> k) & 1) << TP[k] for k in range(5))
        for ab_, sb in SW: lo ^= ((((slot + 1) & 31) >> sb) & 1) << ab_
        e(f"s_xor_b32 s43, s27, {lo}")
    def setup():
        if prio: e(f"s_setprio {prio}")
        consts()
        e("s_lshl_b32 s7, s4, 23")
        srd(S_K, 28, "s7", 0x800000); srd(S_V, 30, "s7", 0x800000); srd(S_WS, 40, None, WSZ)
        jbits("s28")
        e("s_mov_b32 s26, 0\ns_mov_b32 s27, s28\ns_mov_b32 s43, s28")
        e("s_lshl_b32 s8, s3, 10\nv_add_u32 v10, s8, v4\nv_add_u32 v11, s8, v5\nv_mov_b32 v45, 1")
        for k in range(8): e(f"v_mov_b32 v{16+k}, 0")
        e("s_barrier")
    def qcons(i):
        if i == 0: e("v_lshlrev_b32 v31, 16, v30")
        for k in range(8):
            e(f"v_dot2c_f32_bf16_dpp v{16+k}, v{30+(k&1)}, v{64+4*i+(k>>1)} row_newbcast:{i} {DPPF}")
        if i == 15:
            reduce_rows(16)
            e(f"v_lshrrev_b32 v12, 1, v11\nds_write_b64 v12, v[16:17] offset:{L_RED1}")
            e(f"s_mov_b64 exec, 1\nds_add_u32 v1, v45 offset:{C_QP}\ns_mov_b64 exec, -1")
            stamp(1)
    for n in range(48):
        if n < 16:
            if n >= D0: e(f"s_waitcnt vmcnt({D0-1})")
            if kst and n == D0: stamp(3)
            if kst and n == D0 + 4: stamp(4)
            nxt = sum((((n + 1) >> k) & 1) << (13 + QP[4+k]) for k in range(4))
            e(f"buffer_load_dwordx4 {vr(64+4*n)}, v8, {S_W}, s73 offen nt\ns_mov_b32 s73, {nxt}")
        else: issue(n - 16, S_K, D0)
        if n == D0 - 1: setup()
        if 0 <= n - D0 < 16: qcons(n - D0)
    if not kst: stamp(2)
    jitter()
    ldswait(C_QRDY, 1, 1)
    e("s_and_b32 s6, s8, 0xff")
    e(f"v_lshlrev_b32 v12, 4, v3\nds_read_b128 v[24:27], v12 offset:{L_Q}")
    e(f"v_lshlrev_b32 v12, 2, v0\ns_lshl_b32 s8, s3, 12\nv_add_u32 v12, s8, v12\nv_mov_b32 v13, v12")
    e(f"s_mov_b32 s72, {bias}\ns_lshl_b32 s8, s3, 2\nv_mov_b32 v9, s8\nv_mov_b32 v14, s8")
    if G2: e("s_memrealtime s[16:17]\nv_mov_b32 v56, -150\nv_mov_b32 v57, 150")
    e("v_mov_b32 v28, 0xff800000\ns_mov_b32 s15, 7\ns_waitcnt lgkmcnt(0)")
    if G2: e(f"s_mov_b32 s77, s16\nv_mov_b32 v44, s16\nds_write_b32 v9, v44 offset:{L_T2}\nds_write_b32 v9, v44 offset:{L_T2+16}")
    if not kst: stamp(3)
    def ck_top(): e(f"s_memrealtime s[78:79]\nds_read_b32 v47, v9 offset:{L_N}")
    def ck_mid(n):
        if n == 0:
            e("s_waitcnt lgkmcnt(0)" if G2 else "s_waitcnt lgkmcnt(0)\nv_readfirstlane_b32 s72, v47")
            e(f"v_mov_b32 v44, s78\ns_mov_b64 exec, 1")
            e(f"ds_write_b32 v14, v44 offset:{L_TW}\nds_add_u32 v1, v45 offset:{C_PASS}\ns_mov_b64 exec, -1\nv_add_u32 v14, 16, v14")
        if G2:
            k = (n // P2) & 1
            if n % P2 == P2 - 2:
                e(f"s_memrealtime s[16:17]\nds_read_b128 v[52:55], v1 offset:{L_T2 + 16*(k^1)}\nds_read_b32 v47, v9 offset:{L_N}")
            if n % P2 == P2 - 1:
                e(f"s_waitcnt lgkmcnt(0)\nv_mov_b32 v44, s16\nds_write_b32 v9, v44 offset:{L_T2 + 16*k}")
                for q in range(4): e(f"v_subrev_u32 v{52+q}, s77, v{52+q}")
                for q in range(4): e(f"v_med3_i32 v{52+q}, v{52+q}, v56, v57")
                e(f"v_add3_u32 v52, v52, v53, v54\nv_add_u32 v52, v52, v55\nv_mul_i32_i24 v52, {G2}, v52\nv_ashrrev_i32 v52, 9, v52\nv_add_u32 v52, v52, v47")
                e("v_readfirstlane_b32 s72, v52\ns_mov_b32 s77, s16")
            return
        p = 32 // nrd
        if n % p == p - 1 and n < 31: e(f"ds_read_b32 v47, v9 offset:{L_N}")
        if n % p == 0 and n > 0: e("s_waitcnt lgkmcnt(0)\nv_readfirstlane_b32 s72, v47")
    def kpass(srd_):
        ck_top()
        for g in range(2):
            for i in range(16):
                n = 16 * g + i
                bfly_dots(i, 128 + 4 * n, 24); issue(n, srd_); bfly_red(i, 43); ck_mid(n)
            e(f"ds_write_b32 v13, v43 offset:{L_SC + 256*g}\nv_max_f32 v28, v28, v43")
    e("L_k:")
    jitter()
    kpass(S_K)
    e("v_add_u32 v13, 512, v13\ns_sub_u32 s15, s15, 1\ns_cmp_lg_u32 s15, 0\ns_cbranch_scc1 L_k")
    kpass(S_V)
    if not kst: stamp(4)
    jitter()
    for g in range(16): e(f"ds_read_b32 v{64+g}, v12 offset:{L_SC + 256*g}")
    row_allred(28, "v_max_f32")
    rows_allred(28, 44, "v_max_f32")
    e("v_mul_f32 v44, s14, v28\ns_waitcnt lgkmcnt(0)")
    for g in range(16): e(f"v_fma_f32 v{64+g}, v{64+g}, s14, -v44")
    for g in range(16): e(f"v_exp_f32 v{64+g}, v{64+g}")
    for g in range(16): e(f"v_cvt_pk_bf16_f32 v{80+g}, v{64+g}, 0")
    for g in range(2, 16): e(f"ds_write_b32 v12, v{80+g} offset:{L_SC + 256*g}")
    for s in (8, 4, 2, 1):
        for g in range(s): e(f"v_add_f32 v{64+g}, v{64+g}, v{64+g+s}")
    e("v_mov_b32 v30, v80\nv_mov_b32 v46, v81\nv_add_u32 v13, 512, v12")
    for k in range(8): e(f"v_mov_b32 v{16+k}, 0")
    row_allred(64, "v_add_f32")
    rows_allred(64, 44, "v_add_f32")
    e(f"v_mov_b32 v29, v64\nv_lshlrev_b32 v44, 1, v9\ns_mov_b64 exec, 1")
    e(f"ds_write_b64 v44, v[28:29] offset:{L_MLW}\nds_add_u32 v1, v45 offset:{C_ML}\ns_mov_b64 exec, -1\ns_mov_b32 s15, 7")
    def vstep(n):
        for k in range(8):
            e(f"v_dot2c_f32_bf16_dpp v{16+k}, v{30+(k&1)}, v{128+4*n+(k>>1)} row_newbcast:{br(n & 15, 4)} {DPPF}")
    def tail_setup():
        e("s_lshl_b32 s7, s4, 18\ns_lshl_b32 s8, s5, 8\ns_add_u32 s7, s7, s8")
        srd(S_W, 24, "s7", 0x40000 - 2048 + 256); srd(S_W2, 34, "s7", 0x40000 - 2048 + 256)
        e("s_lshl_b32 s8, s3, 5\nv_lshl_add_u32 v7, v2, 3, s8\nv_lshlrev_b32 v8, 11, v7\nv_lshl_add_u32 v8, v3, 4, v8")
        e("v_lshrrev_b32 v60, 3, v3\nv_lshl_add_u32 v60, v60, 2, v7\nv_lshlrev_b32 v60, 2, v60\nv_lshl_add_u32 v61, v6, 9, v60")
        e(f"s_lshl_b32 s18, s4, 12\ns_add_u32 s18, s18, {WS_PB}\ns_lshl_b32 s19, s2, 9\ns_add_u32 s19, s19, {WS_PB}")
        e("s_lshl_b32 s20, 0x01010101, s5\ns_mov_b32 s21, s20\ns_not_b64 s[22:23], s[20:21]")
    tail_setup()
    e("L_v:")
    jitter()
    ck_top()
    for g in range(2):
        e("v_lshlrev_b32 v31, 16, v30")
        for i in range(16):
            n = 16 * g + i
            vstep(n); issue(n, S_V); ck_mid(n)
            if spr and n >= sprn and n % (32 // nrd) == 0:
                e(f"s_sub_u32 s8, s72, {spr}\ns_cmp_eq_u32 s15, 1\ns_cselect_b32 s72, s8, s72")
        e(f"s_waitcnt lgkmcnt(0)\nv_mov_b32 v30, v46\nds_read_b32 v46, v13 offset:{L_SC + 256*g}")
    e("v_add_u32 v13, 512, v13\ns_sub_u32 s15, s15, 1\ns_cmp_lg_u32 s15, 0\ns_cbranch_scc1 L_v")
    stamp(5)
    vq = [f"V{n}" for n in range(32 - DM, 32)]
    def vwait(name):
        if name in vq:
            k = vq.index(name)
            e(f"s_waitcnt vmcnt({len(vq) - 1 - k})")
            del vq[:k + 1]
    def wo(side, i, d=0):
        if i == 0: e("s_mov_b32 s73, 0")
        if d and len(vq) >= d: vwait(vq[len(vq) - d])
        e(f"buffer_load_dwordx4 {vr(64+32*side+4*i)}, v8, {(S_W, S_W2)[side]}, s73 offen offset:{(i&1)*2048} nt")
        vq.append(f"W{side}{i}")
        if i & 1 and i < 7: e("s_add_u32 s73, s73, 4096")
    def ldsB(): e(f"buffer_load_dwordx4 v[48:51], v61, {S_WS}, s18 offen sc1")
    nb = 0
    def spot(m):
        dn = D + 1 if ctl else D
        t = m - (DW - dn)
        return 2 if t < 0 else (10, 20)[t] if t < 2 else min(32 - dn + t, 32)
    for n in range(32):
        if n == 0: e("v_lshlrev_b32 v31, 16, v30")
        if n == 16: e("s_waitcnt lgkmcnt(0)\nv_mov_b32 v30, v46\nv_lshlrev_b32 v31, 16, v30")
        while nb < 8 and spot(nb) == n: wo(1, nb, DW); nb += 1
        vwait(f"V{n}")
        vstep(n)
    while nb < 8: wo(1, nb); nb += 1
    e("s_mov_b64 exec, s[22:23]"); ldsB(); e("s_mov_b64 exec, -1"); vq.append("P")
    for i in range(nA0): wo(0, i)
    jitter()
    stamp(6)
    reduce_rows(16)
    e(f"v_lshrrev_b32 v12, 1, v11\nds_write_b64 v12, v[16:17] offset:{L_RED3}\ns_waitcnt lgkmcnt(0)\ns_barrier")
    e(f"ds_read_b128 v[52:55], v1 offset:{L_FW}")
    for w in range(4): e(f"ds_read_b128 {vr(192+4*w)}, v60 offset:{L_RED3 + 512*w}")
    e(f"v_lshlrev_b32 v12, 1, v7\nds_read_b128 v[24:27], v12 offset:{L_OA}\nds_read_b32 v47, v1 offset:{C_FAST}")
    e("s_waitcnt lgkmcnt(2)")
    for k in range(4): e(f"v_mul_f32 v{56+k}, v52, v{192+k}")
    for w in range(1, 4):
        for k in range(4): e(f"v_fmac_f32 v{56+k}, v{52+w}, v{192+4*w+k}")
    tag(56, 57, 58, 59)
    e(f"s_mov_b64 exec, s[20:21]\nbuffer_store_dwordx4 v[56:59], v60, {S_WS}, s19 offen sc1"); vq.append("S")
    e("s_mov_b64 exec, -1")
    jitter()
    stamp(7)
    for i in range(nA0, 8): wo(0, i, DWA)
    def pairs(side, u):
        a = 64 + 32 * side + 8 * u
        for d in range(4):
            e(f"v_perm_b32 v{128+32*side+8*u+2*d}, v{a+4+d}, v{a+d}, s74\nv_perm_b32 v{129+32*side+8*u+2*d}, v{a+4+d}, v{a+d}, s75")
    for k in range(8): e(f"v_mov_b32 v{16+k}, 0\nv_mov_b32 v{192+k}, 0")
    for u in range(4):
        vwait(f"W1{2*u+1}"); pairs(1, u)
    e("s_waitcnt lgkmcnt(0)\nv_readfirstlane_b32 s72, v47")
    vwait("P")
    for k in range(4): e(f"v_cndmask_b32 v{48+k}, v{48+k}, v{56+k}, s[20:21]")
    vals = (48, 49, 50, 51)
    tagcheck(vals)
    def chainA():
        for u in range(4):
            vwait(f"W0{2*u+1}"); pairs(0, u)
            for k in range(8): e(f"v_dot2c_f32_bf16 v{16+k}, v{24+u}, v{128+8*u+k}")
    def chainB(dst=48):
        for k in range(4): e(f"v_and_b32 v{dst+k}, v{48+k}, v15")
        for p in PAT8:
            for k in range(4): e(f"v_add_f32_dpp v{dst+k}, v{dst+k}, v{dst+k} {p} {DPPF}")
        e(f"v_cvt_pk_bf16_f32 v30, v{dst}, v{dst+1}\nv_cvt_pk_bf16_f32 v31, v{dst+2}, v{dst+3}")
        for u in range(4):
            for k in range(8):
                e(f"v_dot2c_f32_bf16_dpp v{192+k}, v{30+(u&1)}, v{160+8*u+k} row_newbcast:{(u>>1)*8} {DPPF}")
    e("s_cmp_eq_u64 vcc, 0\ns_cbranch_scc1 L_ready\ns_mov_b64 s[16:17], vcc")
    saved = list(vq)
    chainA(); reduce_rows(16)
    e("s_mov_b64 vcc, s[16:17]")
    remask("jj")
    if pipe:
        e(f"s_mov_b32 s76, {spin}")
        ldsB(); e(f"s_sleep {pipe}\nL_pb:"); ldsB()
        e("s_waitcnt vmcnt(1)")
        tagcheck(vals)
        e("s_cmp_eq_u64 vcc, 0\ns_cbranch_scc1 L_pbd\ns_sub_u32 s76, s76, 1\ns_cbranch_scc1 L_pbd")
        remask("jj")
        e("s_branch L_pb\nL_pbd:\ns_mov_b64 exec, -1")
        stamp(8)
        chainB(52); reduce_rows(192)
    else:
        poll(ldsB, list(vals), slp1, mask="jj")
        stamp(8)
        chainB(); reduce_rows(192)
    e("s_branch L_both\nL_ready:")
    vq[:] = saved
    stamp(8)
    chainB(); reduce_rows(192); chainA(); reduce_rows(16)
    e("L_both:")
    jitter()
    e("v_mov_b32 v18, v192\nv_mov_b32 v19, v193")
    e(f"ds_write_b128 v11, v[16:19] offset:{L_RED4}\ns_waitcnt lgkmcnt(0)\ns_barrier")
    e("s_cmp_lg_u32 s3, 0\ns_cbranch_scc1 L_end")
    R4 = 96 if pipe else 44
    for w in range(4): e(f"ds_read_b128 {vr(R4+4*w)}, v4 offset:{L_RED4 + 1024*w}")
    e(f"s_lshl_b32 s8, s2, 9\ns_add_u32 s8, s8, {WS_OA}\ns_add_u32 s9, s8, {WS_OB - WS_OA}\nv_lshrrev_b32 v12, 1, v4")
    e(f"s_add_u32 s7, s9, {WS_F}\ns_add_u32 s77, s8, {WS_F}")
    e("s_waitcnt lgkmcnt(0)")
    for k in (2, 3, 0, 1): e(f"v_add_f32 v{R4+k}, v{R4+k}, v{R4+4+k}\nv_add_f32 v{R4+8+k}, v{R4+8+k}, v{R4+12+k}")
    for k in (2, 3, 0, 1): e(f"v_add_f32 v{44+k}, v{R4+k}, v{R4+8+k}")
    jitter()
    tag(46, 47, 44, 45)
    if fast: e(f"buffer_store_dwordx2 v[46:47], v12, {S_WS}, s7 offen\nbuffer_store_dwordx2 v[44:45], v12, {S_WS}, s77 offen")
    if not nosc1: e(f"buffer_store_dwordx2 v[46:47], v12, {S_WS}, s9 offen sc1\nbuffer_store_dwordx2 v[44:45], v12, {S_WS}, s8 offen sc1")
    stamp(9)
    e("s_cmp_ge_u32 s4, 8\ns_cbranch_scc1 L_fin")
    e("v_lshrrev_b32 v13, 3, v0\nv_lshlrev_b32 v13, 12, v13\nv_lshl_add_u32 v13, v6, 4, v13")
    e(f"s_lshr_b32 s7, s4, 2\ns_mul_i32 s9, s7, {WS_OB - WS_OA}\ns_lshl_b32 s8, s5, 9\ns_add_u32 s9, s9, s8")
    e(f"s_and_b32 s77, s4, 3\ns_lshl_b32 s8, s77, 7\ns_add_u32 s9, s9, s8\ns_add_u32 s9, s9, {WS_OA}")
    e("s_add_u32 s78, s9, 32768\ns_add_u32 s79, s9, 65536\ns_add_u32 s73, s9, 98304")
    srd(S_OUT, 36, None, 4096)
    e("s_lshl_b32 s7, s7, 11\ns_lshl_b32 s8, s5, 8\ns_add_u32 s7, s7, s8\ns_lshl_b32 s8, s77, 6\ns_add_u32 s7, s7, s8")
    e("v_lshl_add_u32 v14, v6, 3, s7\nv_lshrrev_b32 v12, 5, v0\nv_lshl_add_u32 v14, v12, 2, v14")
    def ldsF(fl):
        for k, so in enumerate(("s9", "s78", "s79", "s73")): e(f"buffer_load_dwordx4 {vr(48+4*k)}, v13, {S_WS}, {so} offen {fl}")
    if fast:
        e(f"s_cmp_eq_u32 s72, 0\ns_cbranch_scc1 L_far\nv_add_u32 v13, {WS_F}, v13")
        poll(lambda: ldsF(fast), list(range(48, 64)), 0, tries=ftries, giveup="L_back")
        e(f"s_branch L_got\nL_back:\nv_subrev_u32 v13, {WS_F}, v13\nL_far:")
        if probe:
            for k in range(probe): e("s_sleep 127")
    poll(lambda: ldsF("sc1"), list(range(48, 64)), 0, mask="byte")
    e("L_got:")
    untag(*range(48, 64))
    for k in range(4): e(f"v_add_f32 v{48+k}, v{48+k}, v{52+k}\nv_add_f32 v{56+k}, v{56+k}, v{60+k}")
    for k in range(4): e(f"v_add_f32 v{48+k}, v{48+k}, v{56+k}")
    e("v_permlane32_swap_b32 v48, v50\nv_permlane32_swap_b32 v49, v51\nv_add_f32 v48, v48, v50\nv_add_f32 v49, v49, v51")
    e(f"v_add_f32_dpp v48, v48, v48 row_ror:8 {DPPF}\nv_add_f32_dpp v49, v49, v49 row_ror:8 {DPPF}")
    e("v_mov_b32 v50, v48\nv_mov_b32 v51, v49\nv_permlane16_swap_b32 v48, v50\nv_permlane16_swap_b32 v49, v51\nv_add_f32 v48, v48, v50\nv_add_f32 v49, v49, v51")
    e(f"v_cvt_pk_bf16_f32 v52, v48, v49\ns_mov_b32 exec_lo, 0xff\ns_mov_b32 exec_hi, 0xff\nbuffer_store_dword v52, v14, {S_OUT}, 0 offen")
    if diag:
        e("s_cmp_lg_u32 s2, 0\ns_cbranch_scc1 L_fin\ns_memrealtime s[100:101]\ns_waitcnt lgkmcnt(0)")
        if diag == 30: e(f"s_add_u32 s82, s80, {2*dref}")
        elif diag >= 20:
            e(f"s_mov_b64 exec, -1\ns_mov_b32 s9, 0x1000\nbuffer_load_dwordx4 v[48:51], v4, {S_WS}, s9 offen sc1\ns_waitcnt vmcnt(0)")
            for k in range(4): e(f"v_subrev_u32 v{48+k}, s80, v{48+k}")
            op = "v_min_i32" if diag == 20 else "v_max_i32"
            e(f"{op} v48, v48, v49\n{op} v50, v50, v51\n{op} v48, v48, v50")
            row_allred(48, op); rows_allred(48, 49, op)
            e("v_readfirstlane_b32 s7, v48\ns_abs_i32 s7, s7\ns_add_u32 s82, s80, s7")
        e(f"s_sub_u32 s7, s{80+2*(diag if diag < 20 else 1)}, s80\ns_sub_u32 s7, s7, {dref}\ns_max_i32 s7, s7, 0\ns_min_i32 s7, s7, 5000\ns_mul_i32 s7, s7, 10\ns_add_u32 s7, s7, s100")
        e("L_diag:\ns_memrealtime s[98:99]\ns_waitcnt lgkmcnt(0)\ns_sub_u32 s8, s7, s98\ns_cmp_gt_i32 s8, 0\ns_cbranch_scc1 L_diag")
    e("s_cmp_lg_u32 s2, 0\ns_cbranch_scc1 L_fin")
    e(f"s_mov_b64 exec, 1\nv_mov_b32 v46, s6\nbuffer_store_dword v46, v1, {S_WS}, 0 offen sc1")
    e("L_fin:")
    if prof == 2:
        e("s_memrealtime s[100:101]\ns_mov_b64 exec, 1\ns_waitcnt lgkmcnt(0)\ns_not_b32 s80, s80")
        srd(S_X, 38, None, 256)
        for k in range(11):
            e(f"v_mov_b32 v{100+k}, s{80+2*k}\nbuffer_atomic_umax v{100+k}, v1, {S_X}, 0 offen offset:{4*k}")
    if prof == 1:
        e("s_memrealtime s[100:101]")
        dump(0, 10)
        e(f"v_mov_b32 v44, s100\nv_mov_b32 v45, s101\nbuffer_store_dwordx2 v[44:45], v1, {S_WS}, s8 offen offset:80")
        e("s_getreg_b32 s7, hwreg(HW_REG_XCC_ID)\ns_getreg_b32 s9, hwreg(HW_REG_HW_ID)\nv_mov_b32 v46, s9\nv_mov_b32 v47, s7")
        e(f"buffer_store_dwordx2 v[46:47], v1, {S_WS}, s8 offen offset:120")
    e("s_endpgm")

    e("L_side:")
    if cpf:
        e("s_getpc_b64 s[8:9]\nL_pc:\ns_sub_u32 s8, s8, L_pc-" + KN + "\ns_subb_u32 s9, s9, 0")
        if cpf == 1: e("s_and_b32 s72, s4, 15\ns_lshl_b32 s72, s72, 1\ns_add_u32 s72, s72, s3\ns_sub_u32 s72, s72, 4")
        else: e("s_and_b32 s72, s4, 3\ns_lshl_b32 s72, s72, 1\ns_add_u32 s72, s72, s3\ns_sub_u32 s72, s72, 4")
        e("s_lshl_b32 s72, s72, 10\nv_lshl_add_u32 v20, v0, 4, s72\nglobal_load_dwordx4 v[24:27], v20, s[8:9]")
    consts()
    e(f"v_mov_b32 v16, 0\nv_mov_b32 v17, 0\nv_mov_b32 v18, 0\nv_mov_b32 v19, 0\nds_write_b128 v1, v[16:19] offset:{L_CNT}")
    e(f"s_and_b32 s8, s4, 7\ns_mov_b32 s43, {bias}\ns_cmp_eq_u32 s8, s5\ns_cselect_b32 s43, {max(bias + ab, -64 if cap else -32)}, s43")
    e(f"s_mov_b32 s15, {bias if biasV is None else biasV}")
    if pf: e(f"s_getreg_b32 s8, hwreg(HW_REG_XCC_ID)\ns_bitcmp1_b32 s8, 0\ns_cselect_b32 s8, {pf}, {-pf}\ns_add_u32 s43, s43, s8\ns_add_u32 s15, s15, s8")
    for k in range(4): e(f"v_mov_b32 v{20+k}, s43")
    e(f"ds_write_b128 v1, v[20:23] offset:{L_N}\nv_lshrrev_b32 v11, 1, v4\nv_lshlrev_b32 v12, 2, v0")
    e("v_and_b32 v13, 31, v0\nv_lshlrev_b32 v13, 3, v13")
    e("s_waitcnt lgkmcnt(0)")
    srd(S_WS, 40, None, WSZ)
    e("s_cmp_eq_u32 s3, 5\ns_cbranch_scc1 L_awave")
    e(f"buffer_load_dword v48, v1, {S_WS}, 0 offen sc1")
    if touch & 1:
        jbits("s72")
        e("s_lshl_b32 s8, s4, 23\ns_add_u32 s8, s8, s72\ns_load_dword s72, s[28:29], s8")
    e("s_barrier\ns_waitcnt vmcnt(0) lgkmcnt(0)\nv_readfirstlane_b32 s42, v48")
    mktag()
    if 20 <= diag < 30: e(f"s_lshl_b32 s8, s2, 2\ns_add_u32 s8, s8, 0x1000\nv_mov_b32 v44, s80\ns_mov_b64 exec, 1\nbuffer_store_dword v44, v1, {S_WS}, s8 offen sc1\ns_mov_b64 exec, -1")
    e(f"s_and_b32 s8, s5, 1\ns_mul_i32 s79, s8, {WS_QA - WS_QB}\ns_lshl_b32 s9, s4, 11\ns_add_u32 s9, s9, {WS_QB}")
    e("s_add_u32 s79, s79, s9\ns_lshr_b32 s8, s5, 1\ns_lshl_b32 s8, s8, 9\ns_add_u32 s79, s79, s8")
    jitter()
    ldswait(C_QP, 4, 1)
    for w in range(4): e(f"ds_read_b64 v[{44+2*w}:{45+2*w}], v11 offset:{L_RED1 + 512*w}")
    e("s_waitcnt lgkmcnt(0)")
    e("v_add_f32 v44, v44, v46\nv_add_f32 v45, v45, v47\nv_add_f32 v48, v48, v50\nv_add_f32 v49, v49, v51")
    e("v_add_f32 v52, v44, v48\nv_add_f32 v53, v45, v49")
    jitter()
    e("v_add_u32 v52, 0x80, v52\nv_add_u32 v53, 0x80, v53")
    tag(52, 53)
    e(f"buffer_store_dwordx2 v[52:53], v11, {S_WS}, s79 offen sc1")
    def gatherq(base, so, n):
        for k in range(2 * n): e(f"buffer_load_dwordx4 {vr(base+4*k)}, v4, {S_WS}, {so} offen offset:{k*1024} sc1")
    def sumq(base, out):
        untag(*range(base, base + 8))
        for k in range(4): e(f"v_add_f32 v{base+k}, v{base+k}, v{base+4+k}")
        for k in range(4): e(f"v_mov_b32 v{base+4+k}, v{base+k}")
        for k in range(4): e(f"v_permlane32_swap_b32 v{base+k}, v{base+4+k}")
        for k in range(4): e(f"v_add_f32 v{base+k}, v{base+k}, v{base+4+k}")
        e(f"v_cvt_pk_bf16_f32 v{out}, v{base}, v{base+1}\nv_cvt_pk_bf16_f32 v{out+1}, v{base+2}, v{base+3}")
    poll(lambda: gatherq(64, "s9", 1), list(range(64, 72)), q1, first=True)
    sumq(64, 44)
    stamp(0)
    e(f"ds_write_b64 v13, v[44:45] offset:{L_Q}\ns_or_b32 s8, s6, 0x100\nv_mov_b32 v46, s8\nds_write_b32 v1, v46 offset:{C_QRDY}")
    if touch & 2:
        e("s_lshl_b32 s8, s2, 20\ns_load_dword s72, s[30:31], s8\ns_lshl_b32 s8, s4, 18\ns_load_dword s73, s[24:25], s8")
        e("s_load_dword s77, s[34:35], s8\ns_load_dword s78, s[36:37], 0\ns_waitcnt lgkmcnt(0)")
    def weights(M, L, w, t, mx):
        e(f"v_mov_b32 v{mx}, v{M}")
        red8(mx, "v_max_f32")
        e(f"v_sub_f32 v{w}, v{M}, v{mx}\nv_mul_f32 v{w}, s14, v{w}\nv_exp_f32 v{w}, v{w}\nv_mul_f32 v{t}, v{w}, v{L}")
        red8(t, "v_add_f32")
        e(f"v_rcp_f32 v{t}, v{t}")
    e(f"v_and_b32 v9, 3, v0\nv_lshlrev_b32 v9, 2, v9\nv_lshlrev_b32 v14, 11, v6\nv_mov_b32 v28, 0")
    e(f"s_lshl_b32 s79, s2, 11\ns_add_u32 s79, s79, {WS_ML}\ns_lshl_b32 s73, s4, 14\ns_add_u32 s73, s73, {WS_ML}")
    def times(c):
        ldswait(C_PASS, 4 * (c + 1), 4)
        e(f"ds_read_b32 v24, v9 offset:{L_TW + 16*c}\ns_waitcnt lgkmcnt(0)\nv_readfirstlane_b32 s8, v24")
        e(f"v_subrev_u32 v24, s8, v24\nv_add_u32_dpp v25, v24, v24 quad_perm:[1,0,3,2] {DPPF}\nv_add_u32_dpp v25, v25, v25 quad_perm:[2,3,0,1] {DPPF}")
        e("v_ashrrev_i32 v25, 2, v25\nv_sub_u32 v24, v24, v25\nv_add_u32 v25, s8, v25\nv_lshl_or_b32 v25, v25, 8, s6")
    def control(x, early=0):
        e(f"v_sub_u32 v{x}, v{x}, v25\nv_ashrrev_i32 v{x}, 8, v{x}")
        red8(x, "v_add_u32")
        e(f"v_ashrrev_i32 v{x}, 3, v{x}")
        if not G2: e(f"v_sub_u32 v{x}, v{x}, v24")
        e(f"v_cvt_f32_i32 v{x}, v{x}")
        if GI: e(f"v_fmac_f32 v28, {fbits(GI/100.0)}, v{x}\nv_mul_f32 v{x}, {fbits(G/100.0)}, v{x}\nv_add_f32 v{x}, v{x}, v28\nv_cvt_i32_f32 v{x}, v{x}")
        else: e(f"v_mul_f32 v{x}, {fbits(G/100.0)}, v{x}\nv_cvt_i32_f32 v{x}, v{x}")
        e(f"v_add_u32 v{x}, {'s43' if early else 's15'}, v{x}\nv_min_i32 v{x}, {lim}, v{x}\nv_max_i32 v{x}, {-2*lim if cap else -lim}, v{x}\nds_write_b32 v9, v{x} offset:{L_N}")
    def step(c):
        times(c)
        e(f"v_mov_b32 v26, v25\nv_mov_b32 v27, v25\ns_mov_b64 exec, 1\nbuffer_store_dwordx2 v[26:27], v1, {S_WS}, s79 offen offset:{128*c} sc1\ns_mov_b64 exec, -1")
        va, so = 14, "s73"
        if DG.get(c, -1) >= 0:
            va, so = 29, "s77"
            e(f"v_xor_b32 v29, s5, v6\nv_lshlrev_b32 v29, {DG[c]}, v29\nv_xor_b32 v29, s4, v29\nv_lshl_add_u32 v29, v29, 3, v6\nv_lshlrev_b32 v29, 11, v29\ns_mov_b32 s77, {WS_ML}")
        poll(lambda: e(f"buffer_load_dwordx2 v[62:63], v{va}, {S_WS}, {so} offen offset:{128*c} sc1"), [62, 63], pslp, mask="jj" if cmask else None, first=True)
        control(62, c < 7)
    for c in cl:
        if c < 8: step(c)
    jitter()
    times(8)
    ldswait(C_ML, 4, 4)
    e(f"ds_read_b128 v[16:19], v1 offset:{L_MLW}\nds_read_b128 v[20:23], v1 offset:{L_MLW+16}\ns_waitcnt lgkmcnt(0)")
    e("v_max3_f32 v44, v16, v18, v20\nv_max_f32 v44, v44, v22")
    def factors(ref):
        for w in range(4): e(f"v_sub_f32 v{48+w}, v{16+2*w}, v{ref}")
        for w in range(4): e(f"v_mul_f32 v{48+w}, s14, v{48+w}")
        for w in range(4): e(f"v_exp_f32 v{48+w}, v{48+w}")
    factors(44)
    e("v_mul_f32 v45, v48, v17\nv_fmac_f32 v45, v49, v19\nv_fmac_f32 v45, v50, v21\nv_fmac_f32 v45, v51, v23")
    e("s_getreg_b32 s78, hwreg(HW_REG_XCC_ID)\ns_and_b32 s78, s78, 0xff\ns_lshl_b32 s78, s78, 8\ns_or_b32 s78, s78, s6")
    e("v_and_b32 v47, 0xff, v44\nv_lshl_or_b32 v47, v47, 16, s78")
    tag(44, 45)
    e("v_mov_b32 v46, v25\ns_mov_b64 exec, 1")
    e(f"buffer_store_dwordx4 v[44:47], v1, {S_WS}, s79 offen offset:1024 sc1\ns_mov_b64 exec, -1")
    poll(lambda: e(f"buffer_load_dwordx4 v[60:63], v14, {S_WS}, s73 offen offset:1024 sc1"), [60, 61, 62, 63], pslp, mask="jj" if cmask else None, first=True)
    if 8 in cl: control(62)
    untag(61)
    e("v_lshrrev_b32 v63, 16, v63\nv_and_or_b32 v60, v60, v15, v63")
    weights(60, 61, 56, 57, 58)
    factors(58)
    for w in range(4): e(f"v_mul_f32 v{48+w}, v57, v{48+w}")
    e(f"s_mov_b64 exec, 1\nds_write_b128 v1, v[48:51] offset:{L_FW}\ns_mov_b64 exec, -1")
    rest = [c for c in cl if c > 8]
    while rest and rest[0] <= pac: step(rest.pop(0))
    ldswait(C_PASS, 4 * (pac + 1), 16)
    e(f"s_lshl_b32 s9, s4, 13\ns_add_u32 s9, s9, {WS_PA}\ns_add_u32 s77, s9, 4096\nv_lshlrev_b32 v13, 10, v6")
    def ldPA():
        e(f"buffer_load_dwordx4 v[60:63], v13, {S_WS}, s9 offen offset:512 sc1")
        for k in range(8):
            e(f"buffer_load_dwordx2 v[{64+2*k}:{65+2*k}], v11, {S_WS}, {'s9' if k < 4 else 's77'} offen offset:{(k&3)*1024} sc1")
    jitter()
    poll(ldPA, list(range(60, 80)), 8)
    untag(61, *range(64, 80))
    e("v_lshrrev_b32 v62, 8, v62\nv_and_or_b32 v60, v60, v15, v62")
    weights(60, 61, 56, 57, 58)
    e("v_mul_f32 v56, v56, v57\nv_mov_b32 v44, 0\nv_mov_b32 v45, 0")
    for k in range(8):
        e(f"v_fmac_f32_dpp v44, v56, v{64+2*k} row_newbcast:{k} {DPPF}\nv_fmac_f32_dpp v45, v56, v{65+2*k} row_newbcast:{k} {DPPF}")
    e(f"v_cvt_pk_bf16_f32 v44, v44, v45\nds_write_b32 v12, v44 offset:{L_OA}")
    e(f"v_mov_b32 v44, 0\ns_cmp_ge_u32 s4, 8\ns_cbranch_scc1 L_nocol")
    if fast:
        e(f"v_and_b32 v13, 31, v0\nv_lshlrev_b32 v13, 14, v13\ns_lshl_b32 s9, s5, 11\ns_add_u32 s9, s9, {WS_ML}")
        poll(lambda: e(f"buffer_load_dwordx4 v[60:63], v13, {S_WS}, s9 offen offset:1024 sc1"), [60, 61, 62, 63], pslp)
        e("v_and_b32 v63, 0xffff, v63\nv_cmp_ne_u32 vcc, s78, v63\ns_cmp_eq_u64 vcc, 0\ns_cselect_b32 s8, 1, 0\nv_mov_b32 v44, s8")
    e(f"L_nocol:\nds_write_b32 v1, v44 offset:{C_FAST}")
    jitter()
    for c in rest: step(c)
    if prof == 1:
        stamp(3)
        dump(11, 1)
        e("s_mov_b64 s[80:81], s[86:87]")
        dump(14, 1)
    e("s_waitcnt lgkmcnt(0)\ns_endpgm")

    e("L_awave:\ns_barrier")
    e("s_and_b32 s8, s4, 7\ns_cmp_lg_u32 s8, s5\ns_cbranch_scc1 L_end")
    jitter(63)
    ldswait(C_QRDY, 1, 8)
    e("s_and_b32 s6, s8, 0xff")
    e(f"s_lshr_b32 s78, s4, 3\ns_lshl_b32 s9, s78, 14\ns_add_u32 s9, s9, {WS_QA}\ns_mov_b32 s15, 2")
    e("L_qa:\ns_add_u32 s77, s9, 4096")
    poll(lambda: (gatherq(64, "s9", 2), gatherq(80, "s77", 2)), list(range(64, 96)), 8)
    for k in range(4):
        sumq(64 + 8 * k, 44 + 2 * k)
        e(f"ds_write_b64 v13, v[{44+2*k}:{45+2*k}] offset:{L_QA + 256*k}")
    e("v_add_u32 v13, 1024, v13\ns_add_u32 s9, s9, 8192\ns_sub_u32 s15, s15, 1\ns_cmp_lg_u32 s15, 0\ns_cbranch_scc1 L_qa")
    if apat == 1: e(f"s_lshl_b32 s7, s78, 23\ns_add_u32 s7, s7, {28672*256}\ns_lshl_b32 s8, s5, 14\nv_add_u32 v9, s8, v4")
    else: e(f"s_lshl_b32 s7, s78, 23\ns_lshl_b32 s8, s5, 17\ns_add_u32 s7, s7, s8\ns_add_u32 s7, s7, {28672*256}\nv_mov_b32 v9, v4")
    srd(S_K, 18, "s7", 0x100000 if apat == 1 else 0x20000); srd(S_V, 20, "s7", 0x100000 if apat == 1 else 0x20000)
    e("v_lshlrev_b32 v13, 4, v3\ns_waitcnt lgkmcnt(0)")
    for hh in range(8): e(f"ds_read_b128 {vr(192+4*hh)}, v13 offset:{L_QA + 256*hh}")
    e("s_mov_b32 s43, 0\ns_mov_b32 s72, 0")
    def issueA(reg, i, srd_, so):
        e(f"s_waitcnt vmcnt({DA-1})")
        if apat == 2:
            e(f"s_add_u32 s8, {so}, {i << 14}\nbuffer_load_dwordx4 {vr(reg)}, v9, {srd_}, s8 offen nt")
            if i == 7: e(f"s_add_u32 {so}, {so}, 1024\ns_cmp_eq_u32 {so}, 16384\ns_cselect_b32 {so}, 0x20000, {so}")
            return
        e(f"buffer_load_dwordx4 {vr(reg)}, v9, {srd_}, {so} offen offset:{(i&3)*1024} nt")
        if i & 3 == 3: e(f"s_add_u32 {so}, {so}, 4096")
        if i == 7 and apat == 1: e(f"s_bitcmp1_b32 {so}, 14\ns_cselect_b32 s8, {0x20000 - 0x4000}, 0\ns_add_u32 {so}, {so}, s8")
    def issueAK(i): issueA(128 + 4 * i, i, S_K, "s43")
    def issueAV(i): issueA(160 + 4 * i, i, S_V, "s72")
    for i in range(8): issueAK(i)
    for i in range(8): issueAV(i)
    for k in range(64): e(f"v_mov_b32 v{64+k}, 0")
    e("v_mov_b32 v28, 0xff800000\nv_mov_b32 v29, 0\ns_mov_b32 s15, 16\ns_waitcnt lgkmcnt(0)")
    stamp(0)
    e("L_attA:")
    if aburst: e("s_waitcnt vmcnt(8)")
    for u in range(4):
        for i in range(16):
            bfly_dots(i, 128 + 4 * (2 * u + (i & 1)), 192 + 4 * br(i >> 1, 3)); bfly_red(i, 224 + u)
        if not aburst: issueAK(2 * u); issueAK(2 * u + 1)
        elif u == 3:
            for i in range(8): issueAK(i)
    e("v_max3_f32 v44, v224, v225, v226\nv_max3_f32 v44, v44, v227, v28")
    e(f"v_max_f32_dpp v44, v44, v44 row_ror:8 {DPPF}")
    e("v_sub_f32 v45, v28, v44\nv_mov_b32 v28, v44\nv_mul_f32 v45, s14, v45\nv_exp_f32 v45, v45")
    for u in range(4): e(f"v_sub_f32 v{224+u}, v{224+u}, v44")
    for u in range(4): e(f"v_mul_f32 v{224+u}, s14, v{224+u}")
    for u in range(4): e(f"v_exp_f32 v{224+u}, v{224+u}")
    e("v_mul_f32 v29, v45, v29")
    for u in range(4): e(f"v_mov_b32_dpp v{228+u}, v{224+u} row_ror:8 {DPPF}")
    for u in range(4): e(f"v_add_f32 v29, v29, v{224+u}")
    for u in range(4): e(f"v_cvt_pk_bf16_f32 v{228+u}, v{224+u}, v{228+u}")
    for hh in range(8):
        for k in range(8): e(f"v_mul_f32_dpp v{64+8*hh+k}, v45, v{64+8*hh+k} row_newbcast:{hh} {DPPF}")
    if aburst: e("s_waitcnt vmcnt(8)")
    for u in range(4):
        a = 160 + 8 * u
        for d in range(4):
            e(f"v_perm_b32 v{232+2*d}, v{a+4+d}, v{a+d}, s74\nv_perm_b32 v{233+2*d}, v{a+4+d}, v{a+d}, s75")
        if not aburst: issueAV(2 * u); issueAV(2 * u + 1)
        elif u == 3:
            for i in range(8): issueAV(i)
        for hh in range(8):
            for k in range(8):
                e(f"v_dot2c_f32_bf16_dpp v{64+8*hh+k}, v{228+u}, v{232+k} row_newbcast:{hh} {DPPF}")
    e("s_sub_u32 s15, s15, 1\ns_cmp_lg_u32 s15, 0\ns_cbranch_scc1 L_attA")
    e("v_mov_b32 v44, v28")
    rows_allred(44, 45, "v_max_f32")
    e("v_sub_f32 v46, v28, v44\nv_mul_f32 v46, s14, v46\nv_exp_f32 v46, v46\nv_mul_f32 v29, v46, v29")
    e(f"v_add_f32_dpp v29, v29, v29 row_ror:8 {DPPF}")
    rows_allred(29, 45, "v_add_f32")
    e(f"s_lshl_b32 s8, s78, 16\ns_lshl_b32 s9, s5, 10\ns_add_u32 s8, s8, s9\ns_add_u32 s8, s8, {WS_PA}\ns_mov_b32 s9, s8\nv_lshrrev_b32 v14, 1, v5")
    for hh in range(8):
        a = 64 + 8 * hh
        for k in range(8): e(f"v_mul_f32_dpp v{a+k}, v46, v{a+k} row_newbcast:{hh} {DPPF}")
        reduce_rows(a)
        tag(a, a + 1)
        e(f"buffer_store_dwordx2 v[{a}:{a+1}], v14, {S_WS}, s9 offen sc1\ns_add_u32 s9, s9, 8192")
    jitter()
    e("v_mov_b32 v45, v29\nv_lshlrev_b32 v13, 13, v0\nv_and_b32 v46, 0xff, v44\nv_lshl_or_b32 v46, v46, 8, s6\nv_mov_b32 v47, s6")
    tag(44, 45)
    e(f"s_mov_b64 exec, 0xff\nbuffer_store_dwordx4 v[44:47], v13, {S_WS}, s8 offen offset:512 sc1")
    if prof == 1:
        stamp(1)
        dump(12, 2)
    e("L_end:\ns_endpgm")
    e.fix()
    asm = header([f"; @launch grid=(256,1,1) block=(384,1,1) lds={L_END}"] + DOC.strip().split("\n")) + kstart() + e.text() + ".section .rodata,\"a\"\n" + kdesc(vgpr=256, sgpr=102)
    return asm, f"256:384:{L_END}"

if __name__ == "__main__":
    os.makedirs("k", exist_ok=True)
    specs = []
    for cfg in json.loads(sys.argv[1]):
        name = "k/k9" + "".join(f"_{k}{str(v).replace(' ','')}" for k, v in cfg.items())
        asm, g = gen(**cfg)
        build(asm, name)
        specs.append(f"work/{name}.co:{g}")
    open("specs.txt", "w").write(" ".join(specs) + "\n")
    print(json.dumps(["work/bench", "work/specs.txt", "work/scrub.co"] + [s.split(":")[0] for s in specs]))
```

```python
from common import *
from asmlib import Asm
import json
def vr(a, n=4): return f"v[{a}:{a+n-1}]"
DPPF = "row_mask:0xf bank_mask:0xf"
def br5(i): return int(format(i, "05b")[::-1], 2)
L_TW, L_N, L_CNT, L_T2 = 0, 16, 32, 64
def gen(D=5, ctl=1, G=20, every=1, first=1, bias=0, lim=32, pub=1, send=0, Dend=0, grp=8, ilv=1, sw='x', hh=0, ch=1, G2=0, P=8, nrd=1, ob=-1, on=1, osh=19, jp=None, tp=None, wp='10-11', xa=-1, xb=-1, xc=-1, dg=-1, rp='8-9', sw2=None, xd=-1, xe=-1):
    e = Asm()
    e("s_cmp_ge_u32 s2, 256\ns_cbranch_scc1 L_end\ns_memrealtime s[40:41]")
    e("s_load_dwordx4 s[4:7], s[0:1], 48\ns_load_dwordx4 s[8:11], s[0:1], 88")
    e("v_lshrrev_b32 v1, 6, v0\nv_and_b32 v0, 63, v0\nv_readfirstlane_b32 s3, v1\nv_lshlrev_b32 v2, 4, v0")
    e("v_mov_b32 v8, 0\nv_mov_b32 v9, 0\nv_mov_b32 v10, 0\nv_mov_b32 v11, 0")
    e(f"ds_write_b128 v8, v[8:11] offset:{L_N}\nds_write_b32 v8, v8 offset:{L_CNT}")
    e("s_lshl_b32 s30, s2, 20\ns_waitcnt lgkmcnt(0)\ns_barrier")
    e("s_cmp_eq_u32 s3, 4\ns_cbranch_scc1 L_ctl\ns_setprio 2")
    if jp:
        P3 = [int(x) for x in jp.split("-")]
        W2 = [int(x) for x in wp.split("-")]
        T8 = [int(x) for x in tp.split("-")] if tp else []
        R2 = [int(x) for x in rp.split("-")]
        SW = [tuple(int(y) for y in x.split(".")) for x in sw2.split("-")] if sw2 else []
        T8 += [b for b in range(8, 23) if b not in P3 + W2 + T8 + R2]
        assert sorted(P3 + W2 + T8 + R2) == list(range(8, 23))
        e(f"v_and_b32 v2, 15, v0\nv_lshlrev_b32 v2, 4, v2\nv_bfe_u32 v4, v0, 4, 1\nv_lshl_add_u32 v2, v4, {R2[0]}, v2\nv_bfe_u32 v4, v0, 5, 1\nv_lshl_add_u32 v2, v4, {R2[1]}, v2")
        e("s_lshr_b32 s30, s2, 3\ns_lshl_b32 s30, s30, 23\ns_mov_b32 s37, 0")
        for k in range(3): e(f"s_bfe_u32 s31, s2, {hex(0x10000 + k)}\ns_lshl_b32 s31, s31, {P3[k]}\ns_add_u32 s37, s37, s31")
        for k in range(2): e(f"s_bfe_u32 s31, s3, {hex(0x10000 + k)}\ns_lshl_b32 s31, s31, {W2[k]}\ns_add_u32 s37, s37, s31")
        for wb, ab in ((xa, 13), (xb, 12), (xc, 14), (xd, 15), (xe, 16)):
            if wb >= 0: e(f"s_bfe_u32 s31, s2, {hex(0x10000 + wb)}\ns_lshl_b32 s31, s31, {ab}\ns_xor_b32 s37, s37, s31")
        e("s_mov_b32 s36, 0")
    if ilv > 1:
        lg = ilv.bit_length() - 1
        e(f"s_lshr_b32 s30, s2, {lg}\ns_lshl_b32 s30, s30, {20+lg}\ns_and_b32 s31, s2, {ilv-1}")
        if hh: e(f"s_lshr_b32 s29, s2, 3\ns_add_u32 s31, s31, s29\ns_and_b32 s31, s31, {ilv-1}")
        for c in range(min(ilv, 8)):
            if sw == 'x': e(f"s_xor_b32 s{48+c}, s31, {c}")
            elif sw == 'a': e(f"s_add_u32 s{48+c}, s31, {c}\ns_and_b32 s{48+c}, s{48+c}, {ilv-1}")
            else: e(f"s_mov_b32 s{48+c}, s31")
            e(f"s_mul_i32 s{48+c}, s{48+c}, {4096*ch}")
    e(f"s_add_u32 s12, s4, s30\ns_addc_u32 s13, s5, 0\ns_mov_b32 s14, {0x800000 if jp else 0x100000*ilv}\ns_mov_b32 s15, 0x20000")
    e("s_add_u32 s16, s6, s30\ns_addc_u32 s17, s7, 0")
    e(("" if jp else "s_lshl_b32 s30, s3, 10\nv_add_u32 v2, s30, v2\n") + "s_mov_b32 s20, 0\ns_mov_b32 s35, 0\ns_lshl_b32 s30, s3, 2\nv_mov_b32 v3, s30\nv_mov_b32 v12, 1\nv_mov_b32 v13, 0")
    e(f"s_mov_b32 s24, {bias}")
    if jp: e("s_mov_b32 s20, s37")
    if ob >= 0: e(f"s_lshr_b32 s35, s2, {ob}\ns_and_b32 s35, s35, {(1 << on) - 1}\ns_lshl_b32 s35, s35, {osh}\ns_mov_b32 s20, s35")
    for k in range(4, 8): e(f"v_mov_b32 v{k}, 0")
    n = [0]
    def issue(slot, mod=1):
        c = n[0]; n[0] += 1
        if ctl and mod:
            t = br5(slot)
            e(f"s_waitcnt vmcnt({D})\ns_cmp_lt_i32 s24, {-t}\ns_cbranch_scc1 L_f{c}\ns_waitcnt vmcnt({D-1})\ns_cmp_le_i32 s24, {t}\ns_cbranch_scc1 L_f{c}\ns_waitcnt vmcnt({D-2})\nL_f{c}:")
        elif Dend and mod:
            e(f"s_waitcnt vmcnt({Dend-1})\ns_cbranch_vccnz L_f{c}\ns_waitcnt vmcnt({D-1})\nL_f{c}:")
        else: e(f"s_waitcnt vmcnt({D-1})")
        if jp:
            lo = sum(((slot >> k) & 1) << T8[k] for k in range(5))
            for ab_, sb in SW: lo ^= ((slot >> sb) & 1) << ab_
            e(f"s_xor_b32 s21, s20, {lo}\nbuffer_load_dwordx4 {vr(16+4*slot)}, v2, s[12:15], s21 offen nt")
            if slot == 31:
                e("s_add_u32 s36, s36, 1\ns_mov_b32 s20, s37")
                for k in range(3): e(f"s_bfe_u32 s31, s36, {hex(0x10000 + k)}\ns_lshl_b32 s31, s31, {T8[5+k]}\ns_add_u32 s20, s20, s31")
        elif ilv > 1:
            e(f"s_add_u32 s21, s20, s{48 + (slot // ch) % min(ilv, 8)}\nbuffer_load_dwordx4 {vr(16+4*slot)}, v2, s[12:15], s21 offen nt")
            e(f"s_add_u32 s20, s20, {4096 if slot % ch != ch - 1 else 4096 + 4096*ch*(ilv-1)}")
        else:
            e(f"buffer_load_dwordx4 {vr(16+4*slot)}, v2, s[12:15], s20 offen nt\ns_add_u32 s20, s20, 4096")
            if ob >= 0 and (slot == 31 or osh < 17): e("s_and_b32 s20, s20, 0xfffff")
    def consume(slot):
        r = 16 + 4 * slot
        for k in range(4): e(f"v_xor_b32 v{4+k}, v{4+k}, v{r+k}")
    for i in range(32): issue(i, 0)
    if G2: e(f"s_memrealtime s[28:29]\ns_mov_b32 s34, -150\nv_mov_b32 v148, 150\ns_waitcnt lgkmcnt(0)\ns_mov_b32 s33, s28\nv_mov_b32 v15, s28\nds_write_b32 v3, v15 offset:{L_T2}\nds_write_b32 v3, v15 offset:{L_T2+16}")
    e(f"s_mov_b32 s22, 15\ns_mov_b64 vcc, 0\nL_loop:")
    if ctl: e(f"s_memrealtime s[26:27]\nds_read_b32 v13, v3 offset:{L_N}")
    for i in range(32):
        consume(i); issue(i)
        if G2 and i % P == P - 2:
            k = (i // P) & 1
            e(f"s_memrealtime s[28:29]\nds_read_b128 v[144:147], v8 offset:{L_T2 + 16*(k^1)}\nds_read_b32 v13, v3 offset:{L_N}")
        if G2 and i % P == P - 1:
            k = (i // P) & 1
            e(f"s_waitcnt lgkmcnt(0)\nv_mov_b32 v15, s28\nds_write_b32 v3, v15 offset:{L_T2 + 16*k}")
            for q in range(4): e(f"v_subrev_u32 v{144+q}, s33, v{144+q}")
            for q in range(4): e(f"v_med3_i32 v{144+q}, v{144+q}, s34, v148")
            e(f"v_add3_u32 v144, v144, v145, v146\nv_add_u32 v144, v144, v147\nv_mul_i32_i24 v144, {G2}, v144\nv_ashrrev_i32 v144, 9, v144\nv_add_u32 v144, v144, v13")
            e("v_readfirstlane_b32 s24, v144\ns_mov_b32 s33, s28")
        if nrd > 1 and not G2:
            p = 32 // nrd
            if i % p == p - 1 and i < 31: e(f"ds_read_b32 v13, v3 offset:{L_N}")
            if i % p == 0 and i > 0: e("s_waitcnt lgkmcnt(0)\nv_readfirstlane_b32 s24, v13")
        if ctl and i == 0:
            if G2: e("s_waitcnt lgkmcnt(0)")
            else: e("s_waitcnt lgkmcnt(0)\nv_readfirstlane_b32 s24, v13")
            e(f"v_mov_b32 v14, s26\ns_mov_b64 exec, 1\nds_write_b32 v3, v14 offset:{L_TW}\nds_add_u32 v8, v12 offset:{L_CNT}\ns_mov_b64 exec, -1")
    e(f"s_sub_u32 s22, s22, 1\ns_cmp_le_u32 s22, {send}\ns_cselect_b64 vcc, -1, 0")
    e(f"s_cmp_eq_u32 s22, 8\ns_cselect_b32 s12, s16, s12\ns_cselect_b32 s13, s17, s13\n{'' if jp else 's_cselect_b32 s20, s35, s20'}\ns_cmp_lg_u32 s22, 0\ns_cbranch_scc1 L_loop")
    e("s_waitcnt vmcnt(0) lgkmcnt(0)")
    for i in range(32): consume(i)
    e("v_xor_b32 v4, v4, v5\nv_xor_b32 v6, v6, v7\nv_xor_b32 v4, v4, v6\ns_barrier")
    e("s_memrealtime s[42:43]\ns_getreg_b32 s44, hwreg(HW_REG_XCC_ID)\ns_getreg_b32 s45, hwreg(HW_REG_HW_ID)")
    e("s_lshl_b32 s30, s2, 7\ns_add_u32 s30, s30, 0x20000000\ns_add_u32 s8, s10, s30\ns_addc_u32 s9, s11, 0\ns_waitcnt lgkmcnt(0)")
    e("v_mov_b32 v8, s40\nv_mov_b32 v9, s41\nv_mov_b32 v10, s42\nv_mov_b32 v11, s43\nv_mov_b32 v12, 0\nv_mov_b32 v14, s45\nv_mov_b32 v15, s44")
    e("v_cmp_eq_u32 vcc, 0x12345, v4\nv_addc_co_u32 v10, vcc, 0, v10, vcc\ns_cmp_lg_u32 s3, 0\ns_cbranch_scc1 L_end")
    e("global_store_dwordx4 v12, v[8:11], s[8:9]\nglobal_store_dwordx2 v12, v[14:15], s[8:9] offset:120\ns_branch L_end")
    e("L_ctl:")
    if ctl:
        e("s_add_u32 s12, s10, 0x20040000\ns_addc_u32 s13, s11, 0\ns_mov_b32 s14, 0x40000\ns_mov_b32 s15, 0x20000")
        e(f"v_and_b32 v3, {grp-1}, v0\ns_and_b32 s20, s2, {256-grp}\nv_add_u32 v3, s20, v3\n" + (f"v_xor_b32 v4, s2, v0\nv_and_b32 v4, 7, v4\nv_lshlrev_b32 v4, {3+dg}, v4\nv_xor_b32 v3, v3, v4\n" if dg >= 0 else "") + f"v_lshlrev_b32 v3, 10, v3\ns_lshl_b32 s21, s2, 10")
        e("v_and_b32 v9, 3, v0\nv_lshlrev_b32 v9, 2, v9")
        e(f"s_mov_b32 s22, {first}\nL_cl:")
        e(f"s_lshl_b32 s23, s22, 2\ns_mov_b32 s25, 200000\nL_w:\nds_read_b32 v4, v8 offset:{L_CNT}\ns_waitcnt lgkmcnt(0)\nv_readfirstlane_b32 s26, v4\ns_cmp_ge_u32 s26, s23\ns_cbranch_scc1 L_wd\ns_sub_u32 s25, s25, 1\ns_cbranch_scc1 L_end\ns_sleep 2\ns_branch L_w\nL_wd:")
        e(f"ds_read_b32 v5, v9 offset:{L_TW}\ns_waitcnt lgkmcnt(0)")
        e(f"v_subrev_u32 v5, s40, v5\nv_add_u32_dpp v6, v5, v5 quad_perm:[1,0,3,2] {DPPF}\nv_add_u32_dpp v6, v6, v6 quad_perm:[2,3,0,1] {DPPF}\nv_lshrrev_b32 v6, 2, v6")
        if pub:
            e("v_add_u32 v7, s40, v6\nv_or_b32 v7, 1, v7\ns_add_u32 s27, s21, s23\ns_mov_b64 exec, 1\nbuffer_store_dword v7, v8, s[12:15], s27 offen sc1\ns_mov_b64 exec, -1")
            e("s_mov_b32 s25, 20000\nL_p:\nbuffer_load_dword v10, v3, s[12:15], s23 offen sc1\ns_waitcnt vmcnt(0)\nv_cmp_eq_u32 vcc, 0, v10\ns_cmp_eq_u64 vcc, 0\ns_cbranch_scc1 L_pd\ns_sub_u32 s25, s25, 1\ns_cbranch_scc1 L_end\ns_sleep 4\ns_branch L_p\nL_pd:")
            e("v_subrev_u32 v10, s40, v10")
            e(f"v_add_u32_dpp v10, v10, v10 quad_perm:[1,0,3,2] {DPPF}\nv_add_u32_dpp v10, v10, v10 quad_perm:[2,3,0,1] {DPPF}\nv_add_u32_dpp v10, v10, v10 row_half_mirror {DPPF}")
            if grp == 64:
                e(f"v_add_u32_dpp v10, v10, v10 row_ror:8 {DPPF}\nv_mov_b32 v11, v10\nv_permlane32_swap_b32 v10, v11\nv_add_u32 v10, v10, v11\nv_mov_b32 v11, v10\nv_permlane16_swap_b32 v10, v11\nv_add_u32 v10, v10, v11")
            e(f"v_ashrrev_i32 v6, {grp.bit_length()-1}, v10")
        if G2: e(f"v_add_u32_dpp v5, v5, v5 quad_perm:[1,0,3,2] {DPPF}\nv_add_u32_dpp v5, v5, v5 quad_perm:[2,3,0,1] {DPPF}\nv_lshrrev_b32 v5, 2, v5")
        e(f"v_sub_u32 v5, v6, v5\nv_cvt_f32_i32 v5, v5\nv_mul_f32 v5, {G/100.0}, v5\nv_cvt_i32_f32 v5, v5\nv_add_u32 v5, {bias}, v5\nv_min_i32 v5, {lim}, v5\nv_max_i32 v5, {-lim}, v5")
        e(f"ds_write_b32 v9, v5 offset:{L_N}")
        e(f"s_add_u32 s22, s22, {every}\ns_cmp_le_u32 s22, 14\ns_cbranch_scc1 L_cl\ns_waitcnt lgkmcnt(0)")
    e("L_end:\ns_endpgm")
    e.fix()
    asm = header(["; @launch grid=(256,1,1) block=(320,1,1) lds=256"]) + kstart() + e.text() + ".section .rodata,\"a\"\n" + kdesc(vgpr=152, sgpr=64)
    return asm, "256:320:256"
if __name__ == "__main__":
    specs = []
    for cfg in json.loads(sys.argv[1]):
        name = "st/h" + "".join(f"_{k}{str(v).replace(' ','')}" for k, v in cfg.items())
        asm, g = gen(**cfg); build(asm, name); specs.append(f"work/{name}.co:{g}")
    open("specs.txt", "w").write(" ".join(specs) + "\n")
    print(json.dumps(["work/bench", "work/specs.txt"] + [s.split(":")[0] for s in specs]))
```

```python
import sys, json, gen_fb3
from common import build
base = dict(dg=2, G=14, first=5, every=3, bias=-6, nrd=4)
specs=[]
for a in sys.argv[1:]:
    f = a.split(":")
    cfg = dict(base, wp=f[0], jp=f[1], tp=f[2] or None)
    for kv in f[3:]:
        k, v = kv.split("="); cfg[k] = v if k in ("rp", "sw2") else int(v)
    name = "st/p_" + a.replace(":", "_").replace("=", "")
    asm, g = gen_fb3.gen(**cfg); build(asm, name); specs.append(f"work/{name}.co:{g}")
open("specs.txt","w").write(" ".join(specs)+"\n")
print(json.dumps(["work/bench","work/specs.txt"]+[s.split(":")[0] for s in specs]))
```

```python
from common import *
from asmlib import Asm
import struct, json

def fbits(x): return "0x%08x" % struct.unpack("<I", struct.pack("<f", x))[0]
SC = 128 ** -0.5 * 1.4426950408889634
WS_QB, WS_QA, WS_PA, WS_PB, WS_OA, WS_OB, WS_ML, WS_END = 0x10000, 0x30000, 0x50000, 0x90000, 0xC0000, 0xE0000, 0x100000, 0x1C0000
WS_F = 0x180000 - WS_OA
L_RED1, L_Q, L_OA, L_MLW, L_FW, L_CNT, L_N, L_TW, L_QA, L_RED3, L_RED4, L_SC, L_END = 0, 4096, 4352, 4608, 4640, 4656, 4688, 4704, 5120, 7168, 9216, 13312, 29696
L_T2 = 4944
C_PASS, C_QP, C_ML, C_QRDY, C_FAST = L_CNT, L_CNT + 4, L_CNT + 8, L_CNT + 12, L_CNT + 16
S_K, S_V, S_W, S_W2, S_WS, S_X, S_OUT = "s[44:47]", "s[48:51]", "s[52:55]", "s[56:59]", "s[60:63]", "s[64:67]", "s[68:71]"
DPPF = "row_mask:0xf bank_mask:0xf"
def br(i, n): return int(format(i, f"0{n}b")[::-1], 2)
def vr(a, n=4): return f"v[{a}:{a+n-1}]"

DOC = """
;
; Hand-offs between workgroups go through d_ws; every word carries a launch tag in its low byte (launch number read from
"""

def gen(D=5, D0=6, DA=16, DW=7, nA0=4, DWA=8, prof=0, prio=2, spin=2000000, ctl=1, G=14, GI=0, bias=-4, cks="5,8,10,12", lim=32,
        pac=12, pslp=24, nrd=4, fast="nt", touch=1, perm=0, lateb=1, slp1=0, probe=0, nosc1=0, cpf=0, kst=0, ld='nt', jit=0, jm=15, ab=-14, diag=0, dref=7600, q1=12, cmask=1, G2=0, P2=16, ftries=50000, ilv=0, spr=0, sprn=0, biasV=-9, pipe=0, jp='16-21-14', xa=-1, xb=-1, dg='2-0-2', pf=0, tp=None, sw='16.3-14.2', apat=1, aburst=1, cap=8, qp='0-1-6-7-2-3-4-5', Gs=None, astart=0):
    e = Asm()
    cl = [int(c) for c in cks.split(",")] if ctl else []
    JP = [int(x) for x in jp.split("-")]
    TP = [int(x) for x in tp.split("-")] if tp else [b for b in range(12, 23) if b not in JP]
    assert sorted(JP + TP) == list(range(12, 23))
    SW = [tuple(int(y) for y in x.split(".")) for x in sw.split("-")] if sw else []
    DG = dict(zip([c for c in cl if c != 8], [int(x) for x in dg.split("-")])) if dg else {}
    def jbits(dst):
        e(f"s_mov_b32 {dst}, 0")
        for src, wb, ab_ in [("s5", k, JP[k]) for k in range(3)] + [("s2", w, a_) for w, a_ in ((xa, 13), (xb, 12)) if w >= 0]:
            e(f"s_bfe_u32 s8, {src}, {hex(0x10000 + wb)}\ns_lshl_b32 s8, s8, {ab_}\ns_xor_b32 {dst}, {dst}, s8")
    def nextpass():
        e("s_add_u32 s26, s26, 1\ns_mov_b32 s27, s28")
        for k in range(3): e(f"s_bfe_u32 s8, s26, {hex(0x10000 + k)}\ns_lshl_b32 s8, s8, {TP[5+k]}\ns_or_b32 s27, s27, s8")
    DM = (cap or D + 1) if ctl else D
    WSZ = 0x20100000 if prof == 1 else WS_END
    lab = [0]
    def stamp(k):
        if prof or (diag and k in (0, diag)): e(f"s_memrealtime s[{80+2*k}:{81+2*k}]")
    def dump(first, n):
        e("s_mov_b64 exec, 1\ns_waitcnt lgkmcnt(0)")
        e(f"s_lshl_b32 s8, s2, 7\ns_add_u32 s8, s8, 0x20000000")
        for k in range(first, first + n):
            e(f"v_mov_b32 v{100+2*k}, s{80+2*(k-first)}\nv_mov_b32 v{101+2*k}, s{81+2*(k-first)}")
            e(f"buffer_store_dwordx2 v[{100+2*k}:{101+2*k}], v1, {S_WS}, s8 offen offset:{8*k}")
    def srd(name, base, off_sgpr, size):
        n = int(name[2:name.index(":")])
        if off_sgpr is None: e(f"s_mov_b32 s{n}, s{base}\ns_mov_b32 s{n+1}, s{base+1}")
        else: e(f"s_add_u32 s{n}, s{base}, {off_sgpr}\ns_addc_u32 s{n+1}, s{base+1}, 0")
        e(f"s_mov_b32 s{n+2}, {size}\ns_mov_b32 s{n+3}, 0x20000")
    def reduce_rows(*accs):
        for a in accs:
            for k in range(4): e(f"v_permlane32_swap_b32 v{a+k}, v{a+k+4}")
        for a in accs:
            for k in range(4): e(f"v_add_f32 v{a+k}, v{a+k}, v{a+k+4}")
        for a in accs:
            for k in range(2): e(f"v_permlane16_swap_b32 v{a+k}, v{a+k+2}")
        for a in accs:
            for k in range(2): e(f"v_add_f32 v{a+k}, v{a+k}, v{a+k+2}")
    def rows_allred(x, t, op):
        e(f"v_mov_b32 v{t}, v{x}\nv_permlane32_swap_b32 v{x}, v{t}\n{op} v{x}, v{x}, v{t}")
        e(f"v_mov_b32 v{t}, v{x}\nv_permlane16_swap_b32 v{x}, v{t}\n{op} v{x}, v{x}, v{t}")
    def row_allred(x, op):
        for n in (8, 4, 2, 1): e(f"{op}_dpp v{x}, v{x}, v{x} row_ror:{n} {DPPF}")
    PAT8 = ("quad_perm:[1,0,3,2]", "quad_perm:[2,3,0,1]", "row_half_mirror")
    def red8(x, op):
        for p in PAT8: e(f"{op}_dpp v{x}, v{x}, v{x} {p} {DPPF}")
    def tag(*regs):
        for x in regs: e(f"v_and_or_b32 v{x}, v{x}, v15, s6")
    def untag(*regs):
        for x in regs: e(f"v_and_b32 v{x}, v{x}, v15")
    PS, L1, L2, L3, TA, TB = (32, 33), (34, 35), (36, 37), (38, 39), 40, 41
    def bfly_dots(i, kreg, qreg):
        ps = PS[i & 1]
        e(f"v_dot2_f32_bf16 v{ps}, v{kreg}, v{qreg}, 0")
        for d in range(1, 4): e(f"v_dot2_f32_bf16 v{ps}, v{kreg+d}, v{qreg+d}, v{ps}")
    def bfly_red(i, out):
        if i & 1:
            t = L1[(i >> 1) & 1]
            e(f"v_add_f32_dpp v{t}, v{PS[0]}, v{PS[0]} row_ror:8 row_mask:0xf bank_mask:0x3")
            e(f"v_add_f32_dpp v{t}, v{PS[1]}, v{PS[1]} row_ror:8 row_mask:0xf bank_mask:0xc")
        if i & 3 == 3:
            t = L2[(i >> 2) & 1]
            e(f"v_add_f32_dpp v{t}, v{L1[0]}, v{L1[0]} row_shl:4 row_mask:0xf bank_mask:0x5")
            e(f"v_add_f32_dpp v{t}, v{L1[1]}, v{L1[1]} row_shr:4 row_mask:0xf bank_mask:0xa")
        if i & 7 == 7:
            t = L3[(i >> 3) & 1]
            e(f"v_add_f32_dpp v{TA}, v{L2[0]}, v{L2[0]} quad_perm:[2,3,0,1] {DPPF}")
            e(f"v_add_f32_dpp v{TB}, v{L2[1]}, v{L2[1]} quad_perm:[2,3,0,1] {DPPF}")
            e(f"v_cndmask_b32 v{t}, v{TA}, v{TB}, s[10:11]")
        if i == 15:
            e(f"v_add_f32_dpp v{TA}, v{L3[0]}, v{L3[0]} quad_perm:[1,0,3,2] {DPPF}")
            e(f"v_add_f32_dpp v{TB}, v{L3[1]}, v{L3[1]} quad_perm:[1,0,3,2] {DPPF}")
            e(f"v_cndmask_b32 v{out}, v{TA}, v{TB}, s[12:13]")
    def tagcheck(regs):
        pairs = [regs[i:i+2] for i in range(0, len(regs), 2)]
        e(f"v_bitop3_b32 v42, v{pairs[0][0]}, v{pairs[0][1]}, s6 bitop3:0x7e")
        rest = pairs[1:]
        while rest:
            (a, b) = rest.pop(0)
            e(f"v_bitop3_b32 v43, v{a}, v{b}, s6 bitop3:0x7e")
            if rest:
                (a, b) = rest.pop(0)
                e(f"v_bitop3_b32 v41, v{a}, v{b}, s6 bitop3:0x7e\nv_or3_b32 v42, v42, v43, v41")
            else: e("v_or_b32 v42, v42, v43")
        e("v_and_b32 v42, 0xff, v42\nv_cmp_ne_u32 vcc, 0, v42")
    def remask(mask):
        if mask == "jj":
            e("s_or_b32 s7, vcc_lo, vcc_hi\ns_lshr_b32 s8, s7, 16\ns_or_b32 s7, s7, s8\ns_lshr_b32 s8, s7, 8\ns_or_b32 s7, s7, s8")
            e("s_and_b32 s7, s7, 0xff\ns_mul_i32 s7, s7, 0x01010101\ns_mov_b32 exec_lo, s7\ns_mov_b32 exec_hi, s7")
        if mask == "byte":
            for sh in (4, 2, 1): e(f"s_lshr_b64 s[16:17], vcc, {sh}\ns_or_b64 vcc, vcc, s[16:17]")
            e("s_and_b32 s7, vcc_lo, 0x01010101\ns_and_b32 s8, vcc_hi, 0x01010101\ns_mul_i32 exec_lo, s7, 0xff\ns_mul_i32 exec_hi, s8, 0xff")
    def poll(loads, regs, sleep, mask=None, tries=None, giveup=None, first=False):
        n = lab[0]; lab[0] += 1
        e(f"s_mov_b32 s76, {tries or spin}\nL_poll{n}:")
        if first: e(f"s_sleep {sleep}")
        loads()
        e("s_waitcnt vmcnt(0)")
        tagcheck(regs)
        e(f"s_cmp_eq_u64 vcc, 0\ns_cbranch_scc1 L_polld{n}\ns_sub_u32 s76, s76, 1\ns_cbranch_scc1 {giveup or f'L_polld{n}'}")
        remask(mask)
        if sleep and not first: e(f"s_sleep {sleep}")
        e(f"s_branch L_poll{n}\nL_polld{n}:")
        if mask: e("s_mov_b64 exec, -1")
    def ldswait(off, val, sleep):
        n = lab[0]; lab[0] += 1
        e(f"s_mov_b32 s76, {spin}\nL_lw{n}:\nds_read_b32 v42, v1 offset:{off}\ns_waitcnt lgkmcnt(0)\nv_readfirstlane_b32 s8, v42")
        e(f"s_cmp_ge_u32 s8, {val}\ns_cbranch_scc1 L_lwd{n}\ns_sub_u32 s76, s76, 1\ns_cbranch_scc1 L_lwd{n}\ns_sleep {sleep}\ns_branch L_lw{n}\nL_lwd{n}:")
    jp = [0]
    def jitter(mask=None):
        if not jit: return
        jp[0] += 1; n = lab[0]; lab[0] += 1
        e(f"s_lshl_b32 s98, s2, 3\ns_add_u32 s98, s98, s3\ns_add_u32 s98, s98, {jp[0]*7919 + jit*104729}\ns_mul_i32 s98, s98, 0x9E3779B1\ns_lshr_b32 s99, s98, 15\ns_xor_b32 s98, s98, s99")
        e(f"s_mul_i32 s98, s98, 0x85EBCA6B\ns_lshr_b32 s98, s98, 20\ns_and_b32 s99, s98, 0x700\ns_cmp_lg_u32 s99, 0\ns_cbranch_scc1 L_jd{n}\ns_and_b32 s98, s98, {mask or jm}")
        e(f"L_j{n}:\ns_sleep 32\ns_sub_u32 s98, s98, 1\ns_cbranch_scc0 L_j{n}\nL_jd{n}:")
    def mktag(): e("s_add_u32 s6, s42, 1\ns_and_b32 s6, s6, 0xff")

    e("s_cmp_ge_u32 s2, 256\ns_cbranch_scc1 L_end")
    if perm == 1: e("s_lshr_b32 s3, s2, 3\ns_and_b32 s2, s2, 7\ns_lshl_b32 s2, s2, 5\ns_or_b32 s2, s2, s3")
    if perm == 2: e("s_bfe_u32 s3, s2, 0x10004\ns_xor_b32 s2, s2, s3\ns_bfe_u32 s3, s2, 0x10001\ns_lshl_b32 s3, s3, 3\ns_xor_b32 s2, s2, s3")
    stamp(0)
    e("s_load_dwordx16 s[16:31], s[0:1], 0\ns_load_dwordx8 s[32:39], s[0:1], 64\ns_load_dwordx2 s[40:41], s[0:1], 96")
    e("v_lshrrev_b32 v1, 6, v0\nv_and_b32 v0, 63, v0\nv_readfirstlane_b32 s3, v1")
    e("v_lshrrev_b32 v2, 4, v0\nv_and_b32 v3, 15, v0\nv_and_b32 v6, 7, v0\nv_mov_b32 v1, 0")
    e("s_lshr_b32 s4, s2, 3\ns_and_b32 s5, s2, 7")
    e("s_lshr_b32 s9, s5, 1\ns_lshl_b32 s7, s9, 21\ns_lshl_b32 s8, s4, 8\ns_add_u32 s7, s7, s8")
    QP = [int(x) for x in qp.split("-")]
    if QP == [0, 1, 6, 7, 2, 3, 4, 5]:
        e("s_lshl_b32 s8, s3, 6\nv_add_u32 v7, s8, v2\nv_lshlrev_b32 v8, 13, v7\nv_lshl_add_u32 v8, v3, 4, v8")
        e("v_lshl_add_u32 v9, v3, 2, v7\ns_lshl_b32 s8, s9, 8\nv_add_lshl_u32 v9, v9, s8, 1")
    else:
        e(f"s_and_b32 s8, s3, 1\ns_lshl_b32 s8, s8, {QP[2]}\ns_bfe_u32 s73, s3, 0x10001\ns_lshl_b32 s73, s73, {QP[3]}\ns_or_b32 s8, s8, s73")
        e(f"v_and_b32 v7, 1, v2\nv_lshlrev_b32 v7, {QP[0]}, v7\nv_lshrrev_b32 v8, 1, v2\nv_lshl_or_b32 v7, v8, {QP[1]}, v7\nv_or_b32 v7, s8, v7")
        e("v_lshlrev_b32 v8, 13, v7\nv_lshl_add_u32 v8, v3, 4, v8\nv_mov_b32 v9, v7")
        for k in range(4): e(f"v_bfe_u32 v10, v3, {k}, 1\nv_lshl_or_b32 v9, v10, {QP[4+k]}, v9")
        e("s_lshl_b32 s8, s9, 8\nv_add_lshl_u32 v9, v9, s8, 1")
    e("s_mov_b32 s54, 0x1fe100\ns_mov_b32 s55, 0x20000\ns_mov_b32 s66, 2048\ns_mov_b32 s67, 0x20000\ns_mov_b32 s73, 0")
    def consts():
        e("s_mov_b32 s10, 0xcccccccc\ns_mov_b32 s11, 0xcccccccc\ns_mov_b32 s12, 0xaaaaaaaa\ns_mov_b32 s13, 0xaaaaaaaa")
        e(f"s_mov_b32 s14, {fbits(SC)}\ns_mov_b32 s74, 0x05040100\ns_mov_b32 s75, 0x07060302")
        e("v_lshlrev_b32 v4, 4, v0\nv_lshl_add_u32 v5, v3, 2, v2\nv_lshlrev_b32 v5, 4, v5\nv_mov_b32 v15, 0xffffff00")
    jitter()
    e("s_cmp_ge_u32 s3, 4\ns_cbranch_scc1 L_side")
    e("s_waitcnt lgkmcnt(0)")
    if kst: stamp(2)
    e("s_bitcmp1_b32 s5, 0\ns_cselect_b64 s[52:53], s[22:23], s[32:33]\ns_cselect_b64 s[64:65], s[16:17], s[26:27]")
    e("s_add_u32 s52, s52, s7\ns_addc_u32 s53, s53, 0")
    e(f"buffer_load_ushort v30, v9, {S_X}, 0 offen")
    def issue(slot, srd_, d=None):
        if d is None and ctl:
            c = lab[0]; lab[0] += 1; t = br(slot, 5)
            if cap: e(f"s_waitcnt vmcnt({cap-1})\ns_cmp_lt_i32 s72, {-32-t}\ns_cbranch_scc1 L_f{c}")
            e(f"s_waitcnt vmcnt({D})\ns_cmp_lt_i32 s72, {-t}\ns_cbranch_scc1 L_f{c}\ns_waitcnt vmcnt({D-1})\ns_cmp_le_i32 s72, {t}\ns_cbranch_scc1 L_f{c}\ns_waitcnt vmcnt({D-2})\nL_f{c}:")
        else: e(f"s_waitcnt vmcnt({(d or D)-1})")
        e(f"buffer_load_dwordx4 {vr(128+4*slot)}, v10, {srd_}, s43 offen {ld}")
        if slot == 31: nextpass()
        lo = sum(((((slot + 1) & 31) >> k) & 1) << TP[k] for k in range(5))
        for ab_, sb in SW: lo ^= ((((slot + 1) & 31) >> sb) & 1) << ab_
        e(f"s_xor_b32 s43, s27, {lo}")
    def setup():
        if prio: e(f"s_setprio {prio}")
        consts()
        e("s_lshl_b32 s7, s4, 23")
        srd(S_K, 28, "s7", 0x800000); srd(S_V, 30, "s7", 0x800000); srd(S_WS, 40, None, WSZ)
        jbits("s28")
        e("s_mov_b32 s26, 0\ns_mov_b32 s27, s28\ns_mov_b32 s43, s28")
        e("s_lshl_b32 s8, s3, 10\nv_add_u32 v10, s8, v4\nv_add_u32 v11, s8, v5\nv_mov_b32 v45, 1")
        for k in range(8): e(f"v_mov_b32 v{16+k}, 0")
        e("s_barrier")
    def qcons(i):
        if i == 0: e("v_lshlrev_b32 v31, 16, v30")
        for k in range(8):
            e(f"v_dot2c_f32_bf16_dpp v{16+k}, v{30+(k&1)}, v{64+4*i+(k>>1)} row_newbcast:{i} {DPPF}")
        if i == 15:
            reduce_rows(16)
            e(f"v_lshrrev_b32 v12, 1, v11\nds_write_b64 v12, v[16:17] offset:{L_RED1}")
            e(f"s_mov_b64 exec, 1\nds_add_u32 v1, v45 offset:{C_QP}\ns_mov_b64 exec, -1")
            stamp(1)
    for n in range(48):
        if n < 16:
            if n >= D0: e(f"s_waitcnt vmcnt({D0-1})")
            if kst and n == D0: stamp(3)
            if kst and n == D0 + 4: stamp(4)
            nxt = sum((((n + 1) >> k) & 1) << (13 + QP[4+k]) for k in range(4))
            e(f"buffer_load_dwordx4 {vr(64+4*n)}, v8, {S_W}, s73 offen nt\ns_mov_b32 s73, {nxt}")
        else: issue(n - 16, S_K, D0)
        if n == D0 - 1: setup()
        if 0 <= n - D0 < 16: qcons(n - D0)
    if not kst: stamp(2)
    jitter()
    ldswait(C_QRDY, 1, 1)
    e("s_and_b32 s6, s8, 0xff")
    e(f"v_lshlrev_b32 v12, 4, v3\nds_read_b128 v[24:27], v12 offset:{L_Q}")
    e(f"v_lshlrev_b32 v12, 2, v0\ns_lshl_b32 s8, s3, 12\nv_add_u32 v12, s8, v12\nv_mov_b32 v13, v12")
    e(f"s_mov_b32 s72, {bias}\ns_lshl_b32 s8, s3, 2\nv_mov_b32 v9, s8\nv_mov_b32 v14, s8")
    if G2: e("s_memrealtime s[16:17]\nv_mov_b32 v56, -150\nv_mov_b32 v57, 150")
    e("v_mov_b32 v28, 0xff800000\ns_mov_b32 s15, 7\ns_waitcnt lgkmcnt(0)")
    if G2: e(f"s_mov_b32 s77, s16\nv_mov_b32 v44, s16\nds_write_b32 v9, v44 offset:{L_T2}\nds_write_b32 v9, v44 offset:{L_T2+16}")
    if not kst: stamp(3)
    def ck_top(): e(f"s_memrealtime s[78:79]\nds_read_b32 v47, v9 offset:{L_N}")
    def ck_mid(n):
        if n == 0:
            e("s_waitcnt lgkmcnt(0)" if G2 else "s_waitcnt lgkmcnt(0)\nv_readfirstlane_b32 s72, v47")
            e(f"v_mov_b32 v44, s78\ns_mov_b64 exec, 1")
            e(f"ds_write_b32 v14, v44 offset:{L_TW}\nds_add_u32 v1, v45 offset:{C_PASS}\ns_mov_b64 exec, -1\nv_add_u32 v14, 16, v14")
        if G2:
            k = (n // P2) & 1
            if n % P2 == P2 - 2:
                e(f"s_memrealtime s[16:17]\nds_read_b128 v[52:55], v1 offset:{L_T2 + 16*(k^1)}\nds_read_b32 v47, v9 offset:{L_N}")
            if n % P2 == P2 - 1:
                e(f"s_waitcnt lgkmcnt(0)\nv_mov_b32 v44, s16\nds_write_b32 v9, v44 offset:{L_T2 + 16*k}")
                for q in range(4): e(f"v_subrev_u32 v{52+q}, s77, v{52+q}")
                for q in range(4): e(f"v_med3_i32 v{52+q}, v{52+q}, v56, v57")
                e(f"v_add3_u32 v52, v52, v53, v54\nv_add_u32 v52, v52, v55\nv_mul_i32_i24 v52, {G2}, v52\nv_ashrrev_i32 v52, 9, v52\nv_add_u32 v52, v52, v47")
                e("v_readfirstlane_b32 s72, v52\ns_mov_b32 s77, s16")
            return
        p = 32 // nrd
        if n % p == p - 1 and n < 31: e(f"ds_read_b32 v47, v9 offset:{L_N}")
        if n % p == 0 and n > 0: e("s_waitcnt lgkmcnt(0)\nv_readfirstlane_b32 s72, v47")
    def kpass(srd_):
        ck_top()
        for g in range(2):
            for i in range(16):
                n = 16 * g + i
                bfly_dots(i, 128 + 4 * n, 24); issue(n, srd_); bfly_red(i, 43); ck_mid(n)
            e(f"ds_write_b32 v13, v43 offset:{L_SC + 256*g}\nv_max_f32 v28, v28, v43")
    e("L_k:")
    jitter()
    kpass(S_K)
    e("v_add_u32 v13, 512, v13\ns_sub_u32 s15, s15, 1\ns_cmp_lg_u32 s15, 0\ns_cbranch_scc1 L_k")
    kpass(S_V)
    if not kst: stamp(4)
    jitter()
    for g in range(16): e(f"ds_read_b32 v{64+g}, v12 offset:{L_SC + 256*g}")
    row_allred(28, "v_max_f32")
    rows_allred(28, 44, "v_max_f32")
    e("v_mul_f32 v44, s14, v28\ns_waitcnt lgkmcnt(0)")
    for g in range(16): e(f"v_fma_f32 v{64+g}, v{64+g}, s14, -v44")
    for g in range(16): e(f"v_exp_f32 v{64+g}, v{64+g}")
    for g in range(16): e(f"v_cvt_pk_bf16_f32 v{80+g}, v{64+g}, 0")
    for g in range(2, 16): e(f"ds_write_b32 v12, v{80+g} offset:{L_SC + 256*g}")
    for s in (8, 4, 2, 1):
        for g in range(s): e(f"v_add_f32 v{64+g}, v{64+g}, v{64+g+s}")
    e("v_mov_b32 v30, v80\nv_mov_b32 v46, v81\nv_add_u32 v13, 512, v12")
    for k in range(8): e(f"v_mov_b32 v{16+k}, 0")
    row_allred(64, "v_add_f32")
    rows_allred(64, 44, "v_add_f32")
    e(f"v_mov_b32 v29, v64\nv_lshlrev_b32 v44, 1, v9\ns_mov_b64 exec, 1")
    e(f"ds_write_b64 v44, v[28:29] offset:{L_MLW}\nds_add_u32 v1, v45 offset:{C_ML}\ns_mov_b64 exec, -1\ns_mov_b32 s15, 7")
    def vstep(n):
        for k in range(8):
            e(f"v_dot2c_f32_bf16_dpp v{16+k}, v{30+(k&1)}, v{128+4*n+(k>>1)} row_newbcast:{br(n & 15, 4)} {DPPF}")
    def tail_setup():
        e("s_lshl_b32 s7, s4, 18\ns_lshl_b32 s8, s5, 8\ns_add_u32 s7, s7, s8")
        srd(S_W, 24, "s7", 0x40000 - 2048 + 256); srd(S_W2, 34, "s7", 0x40000 - 2048 + 256)
        e("s_lshl_b32 s8, s3, 5\nv_lshl_add_u32 v7, v2, 3, s8\nv_lshlrev_b32 v8, 11, v7\nv_lshl_add_u32 v8, v3, 4, v8")
        e("v_lshrrev_b32 v60, 3, v3\nv_lshl_add_u32 v60, v60, 2, v7\nv_lshlrev_b32 v60, 2, v60\nv_lshl_add_u32 v61, v6, 9, v60")
        e(f"s_lshl_b32 s18, s4, 12\ns_add_u32 s18, s18, {WS_PB}\ns_lshl_b32 s19, s2, 9\ns_add_u32 s19, s19, {WS_PB}")
        e("s_lshl_b32 s20, 0x01010101, s5\ns_mov_b32 s21, s20\ns_not_b64 s[22:23], s[20:21]")
    tail_setup()
    e("L_v:")
    jitter()
    ck_top()
    for g in range(2):
        e("v_lshlrev_b32 v31, 16, v30")
        for i in range(16):
            n = 16 * g + i
            vstep(n); issue(n, S_V); ck_mid(n)
            if spr and n >= sprn and n % (32 // nrd) == 0:
                e(f"s_sub_u32 s8, s72, {spr}\ns_cmp_eq_u32 s15, 1\ns_cselect_b32 s72, s8, s72")
        e(f"s_waitcnt lgkmcnt(0)\nv_mov_b32 v30, v46\nds_read_b32 v46, v13 offset:{L_SC + 256*g}")
    e("v_add_u32 v13, 512, v13\ns_sub_u32 s15, s15, 1\ns_cmp_lg_u32 s15, 0\ns_cbranch_scc1 L_v")
    stamp(5)
    vq = [f"V{n}" for n in range(32 - DM, 32)]
    def vwait(name):
        if name in vq:
            k = vq.index(name)
            e(f"s_waitcnt vmcnt({len(vq) - 1 - k})")
            del vq[:k + 1]
    def wo(side, i, d=0):
        if i == 0: e("s_mov_b32 s73, 0")
        if d and len(vq) >= d: vwait(vq[len(vq) - d])
        e(f"buffer_load_dwordx4 {vr(64+32*side+4*i)}, v8, {(S_W, S_W2)[side]}, s73 offen offset:{(i&1)*2048} nt")
        vq.append(f"W{side}{i}")
        if i & 1 and i < 7: e("s_add_u32 s73, s73, 4096")
    def ldsB(): e(f"buffer_load_dwordx4 v[48:51], v61, {S_WS}, s18 offen sc1")
    nb = 0
    def spot(m):
        dn = D + 1 if ctl else D
        t = m - (DW - dn)
        return 2 if t < 0 else (10, 20)[t] if t < 2 else min(32 - dn + t, 32)
    for n in range(32):
        if n == 0: e("v_lshlrev_b32 v31, 16, v30")
        if n == 16: e("s_waitcnt lgkmcnt(0)\nv_mov_b32 v30, v46\nv_lshlrev_b32 v31, 16, v30")
        while nb < 8 and spot(nb) == n: wo(1, nb, DW); nb += 1
        vwait(f"V{n}")
        vstep(n)
    while nb < 8: wo(1, nb); nb += 1
    e("s_mov_b64 exec, s[22:23]"); ldsB(); e("s_mov_b64 exec, -1"); vq.append("P")
    for i in range(nA0): wo(0, i)
    jitter()
    stamp(6)
    reduce_rows(16)
    e(f"v_lshrrev_b32 v12, 1, v11\nds_write_b64 v12, v[16:17] offset:{L_RED3}\ns_waitcnt lgkmcnt(0)\ns_barrier")
    e(f"ds_read_b128 v[52:55], v1 offset:{L_FW}")
    for w in range(4): e(f"ds_read_b128 {vr(192+4*w)}, v60 offset:{L_RED3 + 512*w}")
    e(f"v_lshlrev_b32 v12, 1, v7\nds_read_b128 v[24:27], v12 offset:{L_OA}\nds_read_b32 v47, v1 offset:{C_FAST}")
    e("s_waitcnt lgkmcnt(2)")
    for k in range(4): e(f"v_mul_f32 v{56+k}, v52, v{192+k}")
    for w in range(1, 4):
        for k in range(4): e(f"v_fmac_f32 v{56+k}, v{52+w}, v{192+4*w+k}")
    tag(56, 57, 58, 59)
    e(f"s_mov_b64 exec, s[20:21]\nbuffer_store_dwordx4 v[56:59], v60, {S_WS}, s19 offen sc1"); vq.append("S")
    e("s_mov_b64 exec, -1")
    jitter()
    stamp(7)
    for i in range(nA0, 8): wo(0, i, DWA)
    def pairs(side, u):
        a = 64 + 32 * side + 8 * u
        for d in range(4):
            e(f"v_perm_b32 v{128+32*side+8*u+2*d}, v{a+4+d}, v{a+d}, s74\nv_perm_b32 v{129+32*side+8*u+2*d}, v{a+4+d}, v{a+d}, s75")
    for k in range(8): e(f"v_mov_b32 v{16+k}, 0\nv_mov_b32 v{192+k}, 0")
    for u in range(4):
        vwait(f"W1{2*u+1}"); pairs(1, u)
    e("s_waitcnt lgkmcnt(0)\nv_readfirstlane_b32 s72, v47")
    vwait("P")
    for k in range(4): e(f"v_cndmask_b32 v{48+k}, v{48+k}, v{56+k}, s[20:21]")
    vals = (48, 49, 50, 51)
    tagcheck(vals)
    def chainA():
        for u in range(4):
            vwait(f"W0{2*u+1}"); pairs(0, u)
            for k in range(8): e(f"v_dot2c_f32_bf16 v{16+k}, v{24+u}, v{128+8*u+k}")
    def chainB(dst=48):
        for k in range(4): e(f"v_and_b32 v{dst+k}, v{48+k}, v15")
        for p in PAT8:
            for k in range(4): e(f"v_add_f32_dpp v{dst+k}, v{dst+k}, v{dst+k} {p} {DPPF}")
        e(f"v_cvt_pk_bf16_f32 v30, v{dst}, v{dst+1}\nv_cvt_pk_bf16_f32 v31, v{dst+2}, v{dst+3}")
        for u in range(4):
            for k in range(8):
                e(f"v_dot2c_f32_bf16_dpp v{192+k}, v{30+(u&1)}, v{160+8*u+k} row_newbcast:{(u>>1)*8} {DPPF}")
    e("s_cmp_eq_u64 vcc, 0\ns_cbranch_scc1 L_ready\ns_mov_b64 s[16:17], vcc")
    saved = list(vq)
    chainA(); reduce_rows(16)
    e("s_mov_b64 vcc, s[16:17]")
    remask("jj")
    if pipe:
        e(f"s_mov_b32 s76, {spin}")
        ldsB(); e(f"s_sleep {pipe}\nL_pb:"); ldsB()
        e("s_waitcnt vmcnt(1)")
        tagcheck(vals)
        e("s_cmp_eq_u64 vcc, 0\ns_cbranch_scc1 L_pbd\ns_sub_u32 s76, s76, 1\ns_cbranch_scc1 L_pbd")
        remask("jj")
        e("s_branch L_pb\nL_pbd:\ns_mov_b64 exec, -1")
        stamp(8)
        chainB(52); reduce_rows(192)
    else:
        poll(ldsB, list(vals), slp1, mask="jj")
        stamp(8)
        chainB(); reduce_rows(192)
    e("s_branch L_both\nL_ready:")
    vq[:] = saved
    stamp(8)
    chainB(); reduce_rows(192); chainA(); reduce_rows(16)
    e("L_both:")
    jitter()
    e("v_mov_b32 v18, v192\nv_mov_b32 v19, v193")
    e(f"ds_write_b128 v11, v[16:19] offset:{L_RED4}\ns_waitcnt lgkmcnt(0)\ns_barrier")
    e("s_cmp_lg_u32 s3, 0\ns_cbranch_scc1 L_end")
    R4 = 96 if pipe else 44
    for w in range(4): e(f"ds_read_b128 {vr(R4+4*w)}, v4 offset:{L_RED4 + 1024*w}")
    e(f"s_lshl_b32 s8, s2, 9\ns_add_u32 s8, s8, {WS_OA}\ns_add_u32 s9, s8, {WS_OB - WS_OA}\nv_lshrrev_b32 v12, 1, v4")
    e(f"s_add_u32 s7, s9, {WS_F}\ns_add_u32 s77, s8, {WS_F}")
    e("s_waitcnt lgkmcnt(0)")
    for k in (2, 3, 0, 1): e(f"v_add_f32 v{R4+k}, v{R4+k}, v{R4+4+k}\nv_add_f32 v{R4+8+k}, v{R4+8+k}, v{R4+12+k}")
    for k in (2, 3, 0, 1): e(f"v_add_f32 v{44+k}, v{R4+k}, v{R4+8+k}")
    jitter()
    tag(46, 47, 44, 45)
    if fast: e(f"buffer_store_dwordx2 v[46:47], v12, {S_WS}, s7 offen\nbuffer_store_dwordx2 v[44:45], v12, {S_WS}, s77 offen")
    if not nosc1: e(f"buffer_store_dwordx2 v[46:47], v12, {S_WS}, s9 offen sc1\nbuffer_store_dwordx2 v[44:45], v12, {S_WS}, s8 offen sc1")
    stamp(9)
    e("s_cmp_ge_u32 s4, 8\ns_cbranch_scc1 L_fin")
    e("v_lshrrev_b32 v13, 3, v0\nv_lshlrev_b32 v13, 12, v13\nv_lshl_add_u32 v13, v6, 4, v13")
    e(f"s_lshr_b32 s7, s4, 2\ns_mul_i32 s9, s7, {WS_OB - WS_OA}\ns_lshl_b32 s8, s5, 9\ns_add_u32 s9, s9, s8")
    e(f"s_and_b32 s77, s4, 3\ns_lshl_b32 s8, s77, 7\ns_add_u32 s9, s9, s8\ns_add_u32 s9, s9, {WS_OA}")
    e("s_add_u32 s78, s9, 32768\ns_add_u32 s79, s9, 65536\ns_add_u32 s73, s9, 98304")
    srd(S_OUT, 36, None, 4096)
    e("s_lshl_b32 s7, s7, 11\ns_lshl_b32 s8, s5, 8\ns_add_u32 s7, s7, s8\ns_lshl_b32 s8, s77, 6\ns_add_u32 s7, s7, s8")
    e("v_lshl_add_u32 v14, v6, 3, s7\nv_lshrrev_b32 v12, 5, v0\nv_lshl_add_u32 v14, v12, 2, v14")
    def ldsF(fl):
        for k, so in enumerate(("s9", "s78", "s79", "s73")): e(f"buffer_load_dwordx4 {vr(48+4*k)}, v13, {S_WS}, {so} offen {fl}")
    if fast:
        e(f"s_cmp_eq_u32 s72, 0\ns_cbranch_scc1 L_far\nv_add_u32 v13, {WS_F}, v13")
        poll(lambda: ldsF(fast), list(range(48, 64)), 0, tries=ftries, giveup="L_back")
        e(f"s_branch L_got\nL_back:\nv_subrev_u32 v13, {WS_F}, v13\nL_far:")
        if probe:
            for k in range(probe): e("s_sleep 127")
    poll(lambda: ldsF("sc1"), list(range(48, 64)), 0, mask="byte")
    e("L_got:")
    untag(*range(48, 64))
    for k in range(4): e(f"v_add_f32 v{48+k}, v{48+k}, v{52+k}\nv_add_f32 v{56+k}, v{56+k}, v{60+k}")
    for k in range(4): e(f"v_add_f32 v{48+k}, v{48+k}, v{56+k}")
    e("v_permlane32_swap_b32 v48, v50\nv_permlane32_swap_b32 v49, v51\nv_add_f32 v48, v48, v50\nv_add_f32 v49, v49, v51")
    e(f"v_add_f32_dpp v48, v48, v48 row_ror:8 {DPPF}\nv_add_f32_dpp v49, v49, v49 row_ror:8 {DPPF}")
    e("v_mov_b32 v50, v48\nv_mov_b32 v51, v49\nv_permlane16_swap_b32 v48, v50\nv_permlane16_swap_b32 v49, v51\nv_add_f32 v48, v48, v50\nv_add_f32 v49, v49, v51")
    e(f"v_cvt_pk_bf16_f32 v52, v48, v49\ns_mov_b32 exec_lo, 0xff\ns_mov_b32 exec_hi, 0xff\nbuffer_store_dword v52, v14, {S_OUT}, 0 offen")
    if diag:
        e("s_cmp_lg_u32 s2, 0\ns_cbranch_scc1 L_fin\ns_memrealtime s[100:101]\ns_waitcnt lgkmcnt(0)")
        if diag == 30: e(f"s_add_u32 s82, s80, {2*dref}")
        elif diag >= 20:
            e(f"s_mov_b64 exec, -1\ns_mov_b32 s9, 0x1000\nbuffer_load_dwordx4 v[48:51], v4, {S_WS}, s9 offen sc1\ns_waitcnt vmcnt(0)")
            for k in range(4): e(f"v_subrev_u32 v{48+k}, s80, v{48+k}")
            op = "v_min_i32" if diag == 20 else "v_max_i32"
            e(f"{op} v48, v48, v49\n{op} v50, v50, v51\n{op} v48, v48, v50")
            row_allred(48, op); rows_allred(48, 49, op)
            e("v_readfirstlane_b32 s7, v48\ns_abs_i32 s7, s7\ns_add_u32 s82, s80, s7")
        e(f"s_sub_u32 s7, s{80+2*(diag if diag < 20 else 1)}, s80\ns_sub_u32 s7, s7, {dref}\ns_max_i32 s7, s7, 0\ns_min_i32 s7, s7, 5000\ns_mul_i32 s7, s7, 10\ns_add_u32 s7, s7, s100")
        e("L_diag:\ns_memrealtime s[98:99]\ns_waitcnt lgkmcnt(0)\ns_sub_u32 s8, s7, s98\ns_cmp_gt_i32 s8, 0\ns_cbranch_scc1 L_diag")
    e("s_cmp_lg_u32 s2, 0\ns_cbranch_scc1 L_fin")
    e(f"s_mov_b64 exec, 1\nv_mov_b32 v46, s6\nbuffer_store_dword v46, v1, {S_WS}, 0 offen sc1")
    e("L_fin:")
    if prof == 2:
        e("s_memrealtime s[100:101]\ns_mov_b64 exec, 1\ns_waitcnt lgkmcnt(0)\ns_not_b32 s80, s80")
        srd(S_X, 38, None, 256)
        for k in range(11):
            e(f"v_mov_b32 v{100+k}, s{80+2*k}\nbuffer_atomic_umax v{100+k}, v1, {S_X}, 0 offen offset:{4*k}")
    if prof == 1:
        e("s_memrealtime s[100:101]")
        dump(0, 10)
        e(f"v_mov_b32 v44, s100\nv_mov_b32 v45, s101\nbuffer_store_dwordx2 v[44:45], v1, {S_WS}, s8 offen offset:80")
        e("s_getreg_b32 s7, hwreg(HW_REG_XCC_ID)\ns_getreg_b32 s9, hwreg(HW_REG_HW_ID)\nv_mov_b32 v46, s9\nv_mov_b32 v47, s7")
        e(f"buffer_store_dwordx2 v[46:47], v1, {S_WS}, s8 offen offset:120")
    e("s_endpgm")

    e("L_side:")
    if cpf:
        e("s_getpc_b64 s[8:9]\nL_pc:\ns_sub_u32 s8, s8, L_pc-" + KN + "\ns_subb_u32 s9, s9, 0")
        if cpf == 1: e("s_and_b32 s72, s4, 15\ns_lshl_b32 s72, s72, 1\ns_add_u32 s72, s72, s3\ns_sub_u32 s72, s72, 4")
        else: e("s_and_b32 s72, s4, 3\ns_lshl_b32 s72, s72, 1\ns_add_u32 s72, s72, s3\ns_sub_u32 s72, s72, 4")
        e("s_lshl_b32 s72, s72, 10\nv_lshl_add_u32 v20, v0, 4, s72\nglobal_load_dwordx4 v[24:27], v20, s[8:9]")
    consts()
    e(f"v_mov_b32 v16, 0\nv_mov_b32 v17, 0\nv_mov_b32 v18, 0\nv_mov_b32 v19, 0\nds_write_b128 v1, v[16:19] offset:{L_CNT}")
    e(f"s_and_b32 s8, s4, 7\ns_mov_b32 s43, {bias}\ns_cmp_eq_u32 s8, s5\ns_cselect_b32 s43, {max(bias + ab, -64 if cap else -32)}, s43")
    e(f"s_mov_b32 s15, {bias if biasV is None else biasV}")
    if pf: e(f"s_getreg_b32 s8, hwreg(HW_REG_XCC_ID)\ns_bitcmp1_b32 s8, 0\ns_cselect_b32 s8, {pf}, {-pf}\ns_add_u32 s43, s43, s8\ns_add_u32 s15, s15, s8")
    for k in range(4): e(f"v_mov_b32 v{20+k}, s43")
    e(f"ds_write_b128 v1, v[20:23] offset:{L_N}\nv_lshrrev_b32 v11, 1, v4\nv_lshlrev_b32 v12, 2, v0")
    e("v_and_b32 v13, 31, v0\nv_lshlrev_b32 v13, 3, v13")
    e("s_waitcnt lgkmcnt(0)")
    srd(S_WS, 40, None, WSZ)
    e("s_cmp_eq_u32 s3, 5\ns_cbranch_scc1 L_awave")
    e(f"buffer_load_dword v48, v1, {S_WS}, 0 offen sc1")
    if touch & 1:
        jbits("s72")
        e("s_lshl_b32 s8, s4, 23\ns_add_u32 s8, s8, s72\ns_load_dword s72, s[28:29], s8")
    e("s_barrier\ns_waitcnt vmcnt(0) lgkmcnt(0)\nv_readfirstlane_b32 s42, v48")
    mktag()
    if 20 <= diag < 30: e(f"s_lshl_b32 s8, s2, 2\ns_add_u32 s8, s8, 0x1000\nv_mov_b32 v44, s80\ns_mov_b64 exec, 1\nbuffer_store_dword v44, v1, {S_WS}, s8 offen sc1\ns_mov_b64 exec, -1")
    e(f"s_and_b32 s8, s5, 1\ns_mul_i32 s79, s8, {WS_QA - WS_QB}\ns_lshl_b32 s9, s4, 11\ns_add_u32 s9, s9, {WS_QB}")
    e("s_add_u32 s79, s79, s9\ns_lshr_b32 s8, s5, 1\ns_lshl_b32 s8, s8, 9\ns_add_u32 s79, s79, s8")
    jitter()
    ldswait(C_QP, 4, 1)
    for w in range(4): e(f"ds_read_b64 v[{44+2*w}:{45+2*w}], v11 offset:{L_RED1 + 512*w}")
    e("s_waitcnt lgkmcnt(0)")
    e("v_add_f32 v44, v44, v46\nv_add_f32 v45, v45, v47\nv_add_f32 v48, v48, v50\nv_add_f32 v49, v49, v51")
    e("v_add_f32 v52, v44, v48\nv_add_f32 v53, v45, v49")
    jitter()
    e("v_add_u32 v52, 0x80, v52\nv_add_u32 v53, 0x80, v53")
    tag(52, 53)
    e(f"buffer_store_dwordx2 v[52:53], v11, {S_WS}, s79 offen sc1")
    def gatherq(base, so, n):
        for k in range(2 * n): e(f"buffer_load_dwordx4 {vr(base+4*k)}, v4, {S_WS}, {so} offen offset:{k*1024} sc1")
    def sumq(base, out):
        untag(*range(base, base + 8))
        for k in range(4): e(f"v_add_f32 v{base+k}, v{base+k}, v{base+4+k}")
        for k in range(4): e(f"v_mov_b32 v{base+4+k}, v{base+k}")
        for k in range(4): e(f"v_permlane32_swap_b32 v{base+k}, v{base+4+k}")
        for k in range(4): e(f"v_add_f32 v{base+k}, v{base+k}, v{base+4+k}")
        e(f"v_cvt_pk_bf16_f32 v{out}, v{base}, v{base+1}\nv_cvt_pk_bf16_f32 v{out+1}, v{base+2}, v{base+3}")
    poll(lambda: gatherq(64, "s9", 1), list(range(64, 72)), q1, first=True)
    sumq(64, 44)
    stamp(0)
    e(f"ds_write_b64 v13, v[44:45] offset:{L_Q}\ns_or_b32 s8, s6, 0x100\nv_mov_b32 v46, s8\nds_write_b32 v1, v46 offset:{C_QRDY}")
    if touch & 2:
        e("s_lshl_b32 s8, s2, 20\ns_load_dword s72, s[30:31], s8\ns_lshl_b32 s8, s4, 18\ns_load_dword s73, s[24:25], s8")
        e("s_load_dword s77, s[34:35], s8\ns_load_dword s78, s[36:37], 0\ns_waitcnt lgkmcnt(0)")
    def weights(M, L, w, t, mx):
        e(f"v_mov_b32 v{mx}, v{M}")
        red8(mx, "v_max_f32")
        e(f"v_sub_f32 v{w}, v{M}, v{mx}\nv_mul_f32 v{w}, s14, v{w}\nv_exp_f32 v{w}, v{w}\nv_mul_f32 v{t}, v{w}, v{L}")
        red8(t, "v_add_f32")
        e(f"v_rcp_f32 v{t}, v{t}")
    e(f"v_and_b32 v9, 3, v0\nv_lshlrev_b32 v9, 2, v9\nv_lshlrev_b32 v14, 11, v6\nv_mov_b32 v28, 0")
    e(f"s_lshl_b32 s79, s2, 11\ns_add_u32 s79, s79, {WS_ML}\ns_lshl_b32 s73, s4, 14\ns_add_u32 s73, s73, {WS_ML}")
    def times(c):
        ldswait(C_PASS, 4 * (c + 1), 4)
        e(f"ds_read_b32 v24, v9 offset:{L_TW + 16*c}\ns_waitcnt lgkmcnt(0)\nv_readfirstlane_b32 s8, v24")
        e(f"v_subrev_u32 v24, s8, v24\nv_add_u32_dpp v25, v24, v24 quad_perm:[1,0,3,2] {DPPF}\nv_add_u32_dpp v25, v25, v25 quad_perm:[2,3,0,1] {DPPF}")
        e("v_ashrrev_i32 v25, 2, v25\nv_sub_u32 v24, v24, v25\nv_add_u32 v25, s8, v25\nv_lshl_or_b32 v25, v25, 8, s6")
    GS = dict(zip(cl, [int(g) for g in Gs.split("-")])) if Gs else {}
    def control(x, early=0, G=G):
        e(f"v_sub_u32 v{x}, v{x}, v25\nv_ashrrev_i32 v{x}, 8, v{x}")
        red8(x, "v_add_u32")
        e(f"v_ashrrev_i32 v{x}, 3, v{x}")
        if not G2: e(f"v_sub_u32 v{x}, v{x}, v24")
        e(f"v_cvt_f32_i32 v{x}, v{x}")
        if GI: e(f"v_fmac_f32 v28, {fbits(GI/100.0)}, v{x}\nv_mul_f32 v{x}, {fbits(G/100.0)}, v{x}\nv_add_f32 v{x}, v{x}, v28\nv_cvt_i32_f32 v{x}, v{x}")
        else: e(f"v_mul_f32 v{x}, {fbits(G/100.0)}, v{x}\nv_cvt_i32_f32 v{x}, v{x}")
        e(f"v_add_u32 v{x}, {'s43' if early else 's15'}, v{x}\nv_min_i32 v{x}, {lim}, v{x}\nv_max_i32 v{x}, {-2*lim if cap else -lim}, v{x}\nds_write_b32 v9, v{x} offset:{L_N}")
    def step(c):
        times(c)
        e(f"v_mov_b32 v26, v25\nv_mov_b32 v27, v25\ns_mov_b64 exec, 1\nbuffer_store_dwordx2 v[26:27], v1, {S_WS}, s79 offen offset:{128*c} sc1\ns_mov_b64 exec, -1")
        va, so = 14, "s73"
        if DG.get(c, -1) >= 0:
            va, so = 29, "s77"
            e(f"v_xor_b32 v29, s5, v6\nv_lshlrev_b32 v29, {DG[c]}, v29\nv_xor_b32 v29, s4, v29\nv_lshl_add_u32 v29, v29, 3, v6\nv_lshlrev_b32 v29, 11, v29\ns_mov_b32 s77, {WS_ML}")
        poll(lambda: e(f"buffer_load_dwordx2 v[62:63], v{va}, {S_WS}, {so} offen offset:{128*c} sc1"), [62, 63], pslp, mask="jj" if cmask else None, first=True)
        control(62, c < 7, GS.get(c, G))
    for c in cl:
        if c < 8: step(c)
    jitter()
    times(8)
    ldswait(C_ML, 4, 4)
    e(f"ds_read_b128 v[16:19], v1 offset:{L_MLW}\nds_read_b128 v[20:23], v1 offset:{L_MLW+16}\ns_waitcnt lgkmcnt(0)")
    e("v_max3_f32 v44, v16, v18, v20\nv_max_f32 v44, v44, v22")
    def factors(ref):
        for w in range(4): e(f"v_sub_f32 v{48+w}, v{16+2*w}, v{ref}")
        for w in range(4): e(f"v_mul_f32 v{48+w}, s14, v{48+w}")
        for w in range(4): e(f"v_exp_f32 v{48+w}, v{48+w}")
    factors(44)
    e("v_mul_f32 v45, v48, v17\nv_fmac_f32 v45, v49, v19\nv_fmac_f32 v45, v50, v21\nv_fmac_f32 v45, v51, v23")
    e("s_getreg_b32 s78, hwreg(HW_REG_XCC_ID)\ns_and_b32 s78, s78, 0xff\ns_lshl_b32 s78, s78, 8\ns_or_b32 s78, s78, s6")
    e("v_and_b32 v47, 0xff, v44\nv_lshl_or_b32 v47, v47, 16, s78")
    tag(44, 45)
    e("v_mov_b32 v46, v25\ns_mov_b64 exec, 1")
    e(f"buffer_store_dwordx4 v[44:47], v1, {S_WS}, s79 offen offset:1024 sc1\ns_mov_b64 exec, -1")
    poll(lambda: e(f"buffer_load_dwordx4 v[60:63], v14, {S_WS}, s73 offen offset:1024 sc1"), [60, 61, 62, 63], pslp, mask="jj" if cmask else None, first=True)
    if 8 in cl: control(62, 0, GS.get(8, G))
    untag(61)
    e("v_lshrrev_b32 v63, 16, v63\nv_and_or_b32 v60, v60, v15, v63")
    weights(60, 61, 56, 57, 58)
    factors(58)
    for w in range(4): e(f"v_mul_f32 v{48+w}, v57, v{48+w}")
    e(f"s_mov_b64 exec, 1\nds_write_b128 v1, v[48:51] offset:{L_FW}\ns_mov_b64 exec, -1")
    rest = [c for c in cl if c > 8]
    while rest and rest[0] <= pac: step(rest.pop(0))
    ldswait(C_PASS, 4 * (pac + 1), 16)
    e(f"s_lshl_b32 s9, s4, 13\ns_add_u32 s9, s9, {WS_PA}\ns_add_u32 s77, s9, 4096\nv_lshlrev_b32 v13, 10, v6")
    def ldPA():
        e(f"buffer_load_dwordx4 v[60:63], v13, {S_WS}, s9 offen offset:512 sc1")
        for k in range(8):
            e(f"buffer_load_dwordx2 v[{64+2*k}:{65+2*k}], v11, {S_WS}, {'s9' if k < 4 else 's77'} offen offset:{(k&3)*1024} sc1")
    jitter()
    poll(ldPA, list(range(60, 80)), 8)
    untag(61, *range(64, 80))
    e("v_lshrrev_b32 v62, 8, v62\nv_and_or_b32 v60, v60, v15, v62")
    weights(60, 61, 56, 57, 58)
    e("v_mul_f32 v56, v56, v57\nv_mov_b32 v44, 0\nv_mov_b32 v45, 0")
    for k in range(8):
        e(f"v_fmac_f32_dpp v44, v56, v{64+2*k} row_newbcast:{k} {DPPF}\nv_fmac_f32_dpp v45, v56, v{65+2*k} row_newbcast:{k} {DPPF}")
    e(f"v_cvt_pk_bf16_f32 v44, v44, v45\nds_write_b32 v12, v44 offset:{L_OA}")
    e(f"v_mov_b32 v44, 0\ns_cmp_ge_u32 s4, 8\ns_cbranch_scc1 L_nocol")
    if fast:
        e(f"v_and_b32 v13, 31, v0\nv_lshlrev_b32 v13, 14, v13\ns_lshl_b32 s9, s5, 11\ns_add_u32 s9, s9, {WS_ML}")
        poll(lambda: e(f"buffer_load_dwordx4 v[60:63], v13, {S_WS}, s9 offen offset:1024 sc1"), [60, 61, 62, 63], pslp)
        e("v_and_b32 v63, 0xffff, v63\nv_cmp_ne_u32 vcc, s78, v63\ns_cmp_eq_u64 vcc, 0\ns_cselect_b32 s8, 1, 0\nv_mov_b32 v44, s8")
    e(f"L_nocol:\nds_write_b32 v1, v44 offset:{C_FAST}")
    jitter()
    for c in rest: step(c)
    if prof == 1:
        stamp(3)
        dump(11, 1)
        e("s_mov_b64 s[80:81], s[86:87]")
        dump(14, 1)
    e("s_waitcnt lgkmcnt(0)\ns_endpgm")

    e("L_awave:\ns_barrier")
    e("s_and_b32 s8, s4, 7\ns_cmp_lg_u32 s8, s5\ns_cbranch_scc1 L_end")
    jitter(63)
    ldswait(C_QRDY, 1, 8)
    e("s_and_b32 s6, s8, 0xff")
    e(f"s_lshr_b32 s78, s4, 3\ns_lshl_b32 s9, s78, 14\ns_add_u32 s9, s9, {WS_QA}\ns_mov_b32 s15, 2")
    e("L_qa:\ns_add_u32 s77, s9, 4096")
    poll(lambda: (gatherq(64, "s9", 2), gatherq(80, "s77", 2)), list(range(64, 96)), 8)
    for k in range(4):
        sumq(64 + 8 * k, 44 + 2 * k)
        e(f"ds_write_b64 v13, v[{44+2*k}:{45+2*k}] offset:{L_QA + 256*k}")
    e("v_add_u32 v13, 1024, v13\ns_add_u32 s9, s9, 8192\ns_sub_u32 s15, s15, 1\ns_cmp_lg_u32 s15, 0\ns_cbranch_scc1 L_qa")
    if apat == 1: e(f"s_lshl_b32 s7, s78, 23\ns_add_u32 s7, s7, {28672*256}\ns_lshl_b32 s8, s5, 14\nv_add_u32 v9, s8, v4")
    else: e(f"s_lshl_b32 s7, s78, 23\ns_lshl_b32 s8, s5, 17\ns_add_u32 s7, s7, s8\ns_add_u32 s7, s7, {28672*256}\nv_mov_b32 v9, v4")
    srd(S_K, 18, "s7", 0x100000 if apat == 1 else 0x20000); srd(S_V, 20, "s7", 0x100000 if apat == 1 else 0x20000)
    e("v_lshlrev_b32 v13, 4, v3\ns_waitcnt lgkmcnt(0)")
    for hh in range(8): e(f"ds_read_b128 {vr(192+4*hh)}, v13 offset:{L_QA + 256*hh}")
    e("s_mov_b32 s43, 0\ns_mov_b32 s72, 0")
    if apat == 3: e("s_and_b32 s77, s4, 15\ns_lshl_b32 s77, s77, 10")
    def issueA(reg, i, srd_, so):
        e(f"s_waitcnt vmcnt({DA-1})")
        if apat == 2:
            e(f"s_add_u32 s8, {so}, {i << 14}\nbuffer_load_dwordx4 {vr(reg)}, v9, {srd_}, s8 offen nt")
            if i == 7: e(f"s_add_u32 {so}, {so}, 1024\ns_cmp_eq_u32 {so}, 16384\ns_cselect_b32 {so}, 0x20000, {so}")
            return
        if apat == 3:
            e(f"s_xor_b32 s8, {so}, s77\ns_add_u32 s8, s8, {i << 14}\nbuffer_load_dwordx4 {vr(reg)}, v9, {srd_}, s8 offen nt")
            if i == 7: e(f"s_add_u32 {so}, {so}, 1024\ns_cmp_eq_u32 {so}, 16384\ns_cselect_b32 {so}, 0x20000, {so}")
            return
        e(f"buffer_load_dwordx4 {vr(reg)}, v9, {srd_}, {so} offen offset:{(i&3)*1024} nt")
        if i & 3 == 3: e(f"s_add_u32 {so}, {so}, 4096")
        if i == 7 and apat == 1: e(f"s_bitcmp1_b32 {so}, 14\ns_cselect_b32 s8, {0x20000 - 0x4000}, 0\ns_add_u32 {so}, {so}, s8")
    def issueAK(i): issueA(128 + 4 * i, i, S_K, "s43")
    def issueAV(i): issueA(160 + 4 * i, i, S_V, "s72")
    if astart: ldswait(C_PASS, 4 * (astart + 1), 16)
    for i in range(8): issueAK(i)
    for i in range(8): issueAV(i)
    for k in range(64): e(f"v_mov_b32 v{64+k}, 0")
    e("v_mov_b32 v28, 0xff800000\nv_mov_b32 v29, 0\ns_mov_b32 s15, 16\ns_waitcnt lgkmcnt(0)")
    stamp(0)
    e("L_attA:")
    if aburst: e("s_waitcnt vmcnt(8)")
    for u in range(4):
        for i in range(16):
            bfly_dots(i, 128 + 4 * (2 * u + (i & 1)), 192 + 4 * br(i >> 1, 3)); bfly_red(i, 224 + u)
        if not aburst: issueAK(2 * u); issueAK(2 * u + 1)
        elif u == 3:
            for i in range(8): issueAK(i)
    e("v_max3_f32 v44, v224, v225, v226\nv_max3_f32 v44, v44, v227, v28")
    e(f"v_max_f32_dpp v44, v44, v44 row_ror:8 {DPPF}")
    e("v_sub_f32 v45, v28, v44\nv_mov_b32 v28, v44\nv_mul_f32 v45, s14, v45\nv_exp_f32 v45, v45")
    for u in range(4): e(f"v_sub_f32 v{224+u}, v{224+u}, v44")
    for u in range(4): e(f"v_mul_f32 v{224+u}, s14, v{224+u}")
    for u in range(4): e(f"v_exp_f32 v{224+u}, v{224+u}")
    e("v_mul_f32 v29, v45, v29")
    for u in range(4): e(f"v_mov_b32_dpp v{228+u}, v{224+u} row_ror:8 {DPPF}")
    for u in range(4): e(f"v_add_f32 v29, v29, v{224+u}")
    for u in range(4): e(f"v_cvt_pk_bf16_f32 v{228+u}, v{224+u}, v{228+u}")
    for hh in range(8):
        for k in range(8): e(f"v_mul_f32_dpp v{64+8*hh+k}, v45, v{64+8*hh+k} row_newbcast:{hh} {DPPF}")
    if aburst: e("s_waitcnt vmcnt(8)")
    for u in range(4):
        a = 160 + 8 * u
        for d in range(4):
            e(f"v_perm_b32 v{232+2*d}, v{a+4+d}, v{a+d}, s74\nv_perm_b32 v{233+2*d}, v{a+4+d}, v{a+d}, s75")
        if not aburst: issueAV(2 * u); issueAV(2 * u + 1)
        elif u == 3:
            for i in range(8): issueAV(i)
        for hh in range(8):
            for k in range(8):
                e(f"v_dot2c_f32_bf16_dpp v{64+8*hh+k}, v{228+u}, v{232+k} row_newbcast:{hh} {DPPF}")
    e("s_sub_u32 s15, s15, 1\ns_cmp_lg_u32 s15, 0\ns_cbranch_scc1 L_attA")
    e("v_mov_b32 v44, v28")
    rows_allred(44, 45, "v_max_f32")
    e("v_sub_f32 v46, v28, v44\nv_mul_f32 v46, s14, v46\nv_exp_f32 v46, v46\nv_mul_f32 v29, v46, v29")
    e(f"v_add_f32_dpp v29, v29, v29 row_ror:8 {DPPF}")
    rows_allred(29, 45, "v_add_f32")
    e(f"s_lshl_b32 s8, s78, 16\ns_lshl_b32 s9, s5, 10\ns_add_u32 s8, s8, s9\ns_add_u32 s8, s8, {WS_PA}\ns_mov_b32 s9, s8\nv_lshrrev_b32 v14, 1, v5")
    for hh in range(8):
        a = 64 + 8 * hh
        for k in range(8): e(f"v_mul_f32_dpp v{a+k}, v46, v{a+k} row_newbcast:{hh} {DPPF}")
        reduce_rows(a)
        tag(a, a + 1)
        e(f"buffer_store_dwordx2 v[{a}:{a+1}], v14, {S_WS}, s9 offen sc1\ns_add_u32 s9, s9, 8192")
    jitter()
    e("v_mov_b32 v45, v29\nv_lshlrev_b32 v13, 13, v0\nv_and_b32 v46, 0xff, v44\nv_lshl_or_b32 v46, v46, 8, s6\nv_mov_b32 v47, s6")
    tag(44, 45)
    e(f"s_mov_b64 exec, 0xff\nbuffer_store_dwordx4 v[44:47], v13, {S_WS}, s8 offen offset:512 sc1")
    if prof == 1:
        stamp(1)
        dump(12, 2)
    e("L_end:\ns_endpgm")
    e.fix()
    asm = header([f"; @launch grid=(256,1,1) block=(384,1,1) lds={L_END}"] + DOC.strip().split("\n")) + kstart() + e.text() + ".section .rodata,\"a\"\n" + kdesc(vgpr=256, sgpr=102)
    return asm, f"256:384:{L_END}"

if __name__ == "__main__":
    os.makedirs("k", exist_ok=True)
    specs = []
    for cfg in json.loads(sys.argv[1]):
        name = "k/k9" + "".join(f"_{k}{str(v).replace(' ','')}" for k, v in cfg.items())
        asm, g = gen(**cfg)
        build(asm, name)
        specs.append(f"work/{name}.co:{g}")
    open("specs.txt", "w").write(" ".join(specs) + "\n")
    print(json.dumps(["work/bench", "work/specs.txt", "work/scrub.co"] + [s.split(":")[0] for s in specs]))
```
